```python
import torch

def _softmax(x, axis=-1):
    return torch.softmax(x, dim=axis)
def _gelu(x):
    return torch.nn.functional.gelu(x, approximate="tanh")
def _silu(x):
    return torch.nn.functional.silu(x)
def _sigmoid(x):
    return torch.sigmoid(x)
def _layernorm(x, axis=-1, eps=1e-5):
    m = x.mean(dim=axis, keepdim=True)
    v = x.var(dim=axis, keepdim=True, unbiased=False)
    return (x - m) / torch.sqrt(v + eps)
def _scatter_add(tgt, idx, src, axis=0):
    return tgt.clone().index_add_(axis, idx, src)
def _segment_sum(src, seg, n):
    out = torch.zeros((n,) + src.shape[1:], dtype=src.dtype)
    return out.index_add_(0, seg, src)
def _pad(x, pw):
    flat = tuple(v for pair in reversed(pw) for v in pair)
    return torch.nn.functional.pad(x, flat)

kernel_name = 'interleave_layers__spectral_gfnet__glu_gated_reglu__prompt'

def setup_inputs():

    _w = (lambda a: (lambda t: t.to(torch.bfloat16) if t.is_floating_point() else t)(torch.as_tensor(a)))
    def _A_setup():
        B, S, D = 1, 2048, 640
        Df = D // 2 + 1
        return {
            "x": _w((lambda *s: torch.randn(*s, dtype=torch.bfloat16) * 0.05)(B, S, D)),
            "w_r": _w((lambda *s: torch.randn(*s, dtype=torch.bfloat16) * 0.4)(S, Df) * 0.02),
            "w_i": _w((lambda *s: torch.randn(*s, dtype=torch.bfloat16) * 0.4)(S, Df) * 0.02),
        }
    _A_in = _A_setup()

    def _B_setup():
        B, S, D, F = 1, 2048, 640, 1536
        return {
            "x": _w((lambda *s: torch.randn(*s, dtype=torch.bfloat16) * 0.05)(B, S, D)),
            "W_gate": _w((lambda *s: torch.randn(*s, dtype=torch.bfloat16) * 0.2)(D, F) * (2.0 / D) ** 0.5),
            "W_up": _w((lambda *s: torch.randn(*s, dtype=torch.bfloat16) * 0.2)(D, F) * (2.0 / D) ** 0.5),
            "W_down": _w((lambda *s: torch.randn(*s, dtype=torch.bfloat16) * 0.2)(F, D) * (1.0 / F) ** 0.5),
        }
    _B_in = _B_setup()

    return {
        "A_x": _A_in["x"],
        "A_w_r": _A_in["w_r"],
        "A_w_i": _A_in["w_i"],
        "B_x": _B_in["x"],
        "B_W_gate": _B_in["W_gate"],
        "B_W_up": _B_in["W_up"],
        "B_W_down": _B_in["W_down"],
    }

def reference(A_x, A_w_r, A_w_i, B_x, B_W_gate, B_W_up, B_W_down):
    def _A_ref(x, w_r, w_i):
        B, S, D = x.shape
        X = (lambda x, axes=(-2,-1): torch.fft.rfft2(x.float(), dim=axes))(x, axes=(-2, -1))
        W = w_r + 1j * w_i
        X = X * W
        y = (lambda x, s, axes=(-2,-1): torch.fft.irfft2(x, s=s, dim=axes).to(torch.bfloat16))(X, (S, D), axes=(-2, -1))
        return y

    def _B_ref(x, W_gate, W_up, W_down):
        gate = torch.einsum("bsd,df->bsf", x, W_gate)
        up = torch.einsum("bsd,df->bsf", x, W_up)
        gate = gate * (lambda x, dt: x.to(dt))(gate > 0, gate.dtype)
        h = gate * up
        return torch.einsum("bsf,fd->bsd", h, W_down)

    x = A_x
    x = x + _A_ref(_layernorm(x, axis=-1), A_w_r, A_w_i)
    x = x + _B_ref(_layernorm(x, axis=-1), B_W_gate, B_W_up, B_W_down)
    x = x + _A_ref(_layernorm(x, axis=-1), A_w_r, A_w_i)
    x = x + _B_ref(_layernorm(x, axis=-1), B_W_gate, B_W_up, B_W_down)
    return x
```

```python
import re

REG = re.compile(r'^(-?)(?:abs\()?([vas])(?:\[(\d+):(\d+)\]|(\d+))\)?$')

def regs_of(op):
    op = op.strip()
    if op in ('vcc',): return {('s', 'vcc')}
    if op in ('vcc_lo', 'vcc_hi'): return {('s', 'vcc')}
    if op == 'm0': return {('s', 'm0')}
    if op in ('exec', 'exec_lo', 'exec_hi'): return {('s', 'exec')}
    m = REG.match(op)
    if not m: return set()
    k = m.group(2)
    if m.group(3) is not None:
        return {(k, i) for i in range(int(m.group(3)), int(m.group(4)) + 1)}
    return {(k, int(m.group(5)))}

TRANS = ('v_exp_f32', 'v_log_f32', 'v_rcp_f32', 'v_rsq_f32', 'v_sqrt_f32', 'v_sin_f32', 'v_cos_f32', 'v_rcp_iflag_f32')

class Ins:
    __slots__ = ('text', 'mn', 'ops', 'mods', 'rd', 'wr', 'kind', 'tag', 'srcc', 'ab', 'dpp', 'wide_data')
    def __init__(self, text, tag=None):
        self.text = text; self.tag = tag
        t = text.split(';')[0].strip()
        parts = t.split(None, 1)
        self.mn = parts[0]
        rest = parts[1] if len(parts) > 1 else ''
        ops = [o.strip() for o in rest.split(',')] if rest else []
        mods = ''
        if ops:
            joined = []
            depth = 0; cur = ''
            for ch in rest:
                if ch == '[' or ch == '(': depth += 1
                if ch == ']' or ch == ')': depth -= 1
                if ch == ',' and depth == 0: joined.append(cur.strip()); cur = ''
                else: cur += ch
            joined.append(cur.strip())
            ops = joined
            last = ops[-1].split(None, 1)
            ops[-1] = last[0]
            mods = last[1] if len(last) > 1 else ''
        self.ops = ops; self.mods = mods
        self.rd = set(); self.wr = set(); self.kind = 'other'; self.srcc = set(); self.ab = set(); self.dpp = False
        self.wide_data = set()
        mn = self.mn
        R = regs_of
        if mn.startswith('v_mfma'):
            self.kind = 'mfma'; self.wr = R(ops[0]); self.ab = R(ops[1]) | R(ops[2]); self.srcc = R(ops[3]); self.rd = self.ab | self.srcc
        elif mn.startswith('v_cmp'):
            self.kind = 'valu'; self.wr = R(ops[0]); self.rd = set().union(*[R(o) for o in ops[1:]])
        elif mn.startswith('v_permlane') and 'swap' in mn:
            self.kind = 'valu'; self.wr = R(ops[0]) | R(ops[1]); self.rd = set(self.wr)
        elif mn.startswith(('v_add_co', 'v_sub_co', 'v_addc_co', 'v_subb_co')):
            self.kind = 'valu'; self.wr = R(ops[0]) | R(ops[1]); self.rd = set().union(*[R(o) for o in ops[2:]])
        elif mn.startswith('v_'):
            self.kind = 'valu'; self.wr = R(ops[0]); self.rd = set().union(set(), *[R(o) for o in ops[1:]])
            if mn.startswith(('v_fmac', 'v_pk_fmac', 'v_dot2c', 'v_writelane')): self.rd |= self.wr
            if 'dpp' in mn or 'row_' in mods or 'quad_perm' in mods:
                self.dpp = True; self.rd |= self.wr
        elif mn.startswith('buffer_load'):
            self.kind = 'vmem'
            if ' lds' in ' ' + mods:
                self.rd = set().union(*[R(o) for o in ops]) | {('s', 'm0')}; self.kind = 'vmem_lds'
            else:
                self.wr = R(ops[0]); self.rd = set().union(*[R(o) for o in ops[1:]])
                if 'd16' in mn: self.rd |= self.wr
        elif mn.startswith('buffer_store'):
            self.kind = 'vmem'; self.rd = set().union(*[R(o) for o in ops])
            if 'x4' in mn or 'x3' in mn: self.wide_data = R(ops[0])
        elif mn.startswith('buffer_atomic'):
            self.kind = 'vmem'; self.rd = set().union(*[R(o) for o in ops])
            if 'sc0' in mods: self.wr = R(ops[0])
        elif mn.startswith('global_load'):
            self.kind = 'vmem'; self.wr = R(ops[0]); self.rd = set().union(*[R(o) for o in ops[1:]])
        elif mn.startswith('global_store'):
            self.kind = 'vmem'; self.rd = set().union(*[R(o) for o in ops])
            if 'x4' in mn or 'x3' in mn: self.wide_data = R(ops[1])
        elif mn.startswith('ds_read') or mn.startswith('ds_bpermute') or mn.startswith('ds_swizzle'):
            self.kind = 'ds'; self.wr = R(ops[0]); self.rd = set().union(*[R(o) for o in ops[1:]])
        elif mn.startswith('ds_'):
            self.kind = 'ds'; self.rd = set().union(*[R(o) for o in ops])
        elif mn.startswith(('s_load', 's_memtime', 's_memrealtime')):
            self.kind = 'smem'; self.wr = R(ops[0]); self.rd = set().union(set(), *[R(o) for o in ops[1:]])
        elif mn in ('s_waitcnt', 's_nop', 's_barrier', 's_endpgm', 's_sleep', 's_setprio') or mn.startswith(('s_branch', 's_cbranch')):
            self.kind = 'ctl'
        elif mn.startswith(('s_cmp', 's_bitcmp', 's_setpc')):
            self.kind = 'salu'; self.rd = set().union(*[R(o) for o in ops])
        elif mn.startswith('s_'):
            self.kind = 'salu'; self.wr = R(ops[0]); self.rd = set().union(set(), *[R(o) for o in ops[1:]])
            if 'saveexec' in mn: self.wr |= {('s', 'exec')}
            if mn.startswith(('s_addk', 's_mulk', 's_bitset')): self.rd |= self.wr
        else:
            raise ValueError('unknown instruction ' + text)

def weight(i):
    if i.mn == 's_nop': return int(i.ops[0], 0) + 1
    return 1

def need(p, c):
    n = 0
    isv = lambda s: {r for r in s if r[0] in 'va'}
    iss = lambda s: {r for r in s if r[0] == 's'}
    if p.kind == 'mfma':
        big = '32x32' in p.mn
        if c.kind == 'mfma':
            if p.wr & c.ab: n = max(n, 12 if big else 8)
            if p.wr & c.srcc and p.wr != c.srcc: n = max(n, 10 if big else 6)
            if p.wr & c.wr and not (p.wr & c.srcc): n = max(n, 12 if big else 8)
        elif c.kind in ('valu', 'vmem', 'vmem_lds', 'ds'):
            if p.wr & (c.rd | c.wr): n = max(n, 12 if big else 8)
            if c.kind == 'valu' and p.srcc & c.wr: n = max(n, 7 if big else 3)
    elif p.kind == 'valu':
        vw = isv(p.wr); sw = iss(p.wr)
        if c.kind == 'mfma' and vw & c.rd: n = max(n, 2)
        if c.kind == 'valu':
            if p.mn.startswith(TRANS) and vw & c.rd: n = max(n, 1)
            if (c.mn.startswith('v_permlane') or c.dpp) and vw & c.rd: n = max(n, 2)
            if c.mn.startswith(('v_readfirstlane', 'v_readlane')) and vw & c.rd: n = max(n, 1)
            if sw & c.rd: n = max(n, 4 if c.mn.startswith(('v_readlane', 'v_writelane')) else 2)
            if ('op_sel' in p.mods or 'sdwa' in p.mn) and not p.mn.startswith('v_pk') and vw & (c.rd | c.wr): n = max(n, 1)
        if c.kind in ('vmem', 'vmem_lds') and sw & c.rd: n = max(n, 5)
        if c.kind in ('vmem', 'vmem_lds', 'ds') and p.mn.startswith(TRANS) and vw & c.rd: n = max(n, 1)
        if c.kind == 'salu' and sw & c.rd: n = max(n, 1)
        if c.kind == 'ctl' and c.mn.startswith('s_cbranch_vcc') and ('s', 'vcc') in sw: n = max(n, 1)
    elif p.kind == 'salu':
        if c.kind == 'vmem_lds' and ('s', 'm0') in p.wr: n = max(n, 1)
    if p.wide_data and p.wide_data & c.wr: n = max(n, 2)
    return n

class Asm:
    def __init__(self):
        self.out = []
        self.hist = []
        self.vm = []
        self.lg = []
        self.nins = 0; self.stats = {}
        self.uid = 0
    def raw(self, s): self.out.append(s)
    def comment(self, s): self.out.append('    ; ' + s)
    def _put(self, i):
        nop = 0; dist = 0
        for p in reversed(self.hist):
            r = need(p, i)
            if r > dist: nop = max(nop, r - dist)
            dist += weight(p)
            if dist >= 12: break
        if nop > 0:
            n = Ins('s_nop %d' % (nop - 1)); self.out.append('    ' + n.text); self.hist.append(n); self.nins += 1
            self.stats['nopstates'] = self.stats.get('nopstates', 0) + nop
        self.out.append('    ' + i.text); self.hist.append(i); self.nins += 1
        self.stats[i.kind] = self.stats.get(i.kind, 0) + 1
        if len(self.hist) > 40: self.hist = self.hist[-20:]
    def _wait(self, vm=None, lg=None):
        parts = []
        if vm is not None:
            vm = min(vm, 63)
            parts.append('vmcnt(%d)' % vm); self.vm = self.vm[len(self.vm) - vm:] if vm < len(self.vm) else self.vm
            if vm == 0: self.vm = []
        if lg is not None:
            if any(x[2] for x in self.lg): lg = 0
            lg = min(lg, 15)
            parts.append('lgkmcnt(%d)' % lg); self.lg = self.lg[len(self.lg) - lg:] if lg < len(self.lg) else self.lg
            if lg == 0: self.lg = []
        self._put(Ins('s_waitcnt ' + ' '.join(parts)))
    def __call__(self, text, tag=None):
        if isinstance(text, (list, tuple)):
            for t in text: self(t)
            return
        if callable(text):
            text(self); return
        i = Ins(text, tag)
        if i.mn == 's_waitcnt':
            vm = re.search(r'vmcnt\((\d+)\)', text); lg = re.search(r'lgkmcnt\((\d+)\)', text)
            self._wait(int(vm.group(1)) if vm else None, int(lg.group(1)) if lg else None); return
        touch = i.rd | i.wr
        vm = lg = None
        for k in range(len(self.vm) - 1, -1, -1):
            if self.vm[k][0] & touch: vm = len(self.vm) - 1 - k; break
        for k in range(len(self.lg) - 1, -1, -1):
            if self.lg[k][0] & touch: lg = len(self.lg) - 1 - k; break
        if vm is not None or lg is not None: self._wait(vm, lg)
        self._put(i)
        if i.kind in ('vmem', 'vmem_lds'): self.vm.append((set(i.wr), tag))
        elif i.kind == 'ds': self.lg.append((set(i.wr), tag, False))
        elif i.kind == 'smem': self.lg.append((set(i.wr), tag, True))
    def wait_vm(self, tag):
        for k in range(len(self.vm) - 1, -1, -1):
            if self.vm[k][1] == tag: self._wait(vm=len(self.vm) - 1 - k); return
    def wait_lg(self, tag):
        for k in range(len(self.lg) - 1, -1, -1):
            if self.lg[k][1] == tag: self._wait(lg=len(self.lg) - 1 - k); return
    def collapse(self, extra=None):
        s = set()
        for w, _ in self.vm: s |= w
        if extra: s |= extra
        self.vm = [(s, 'merged')]
        s = set()
        for w, _, _ in self.lg: s |= w
        self.lg = [(s, 'merged', True)] if self.lg else []
    def label(self, name, pad=0):
        self.out.append(name + ':')
        if pad: self._put(Ins('s_nop %d' % (pad - 1)))
    def newlabel(self, base):
        self.uid += 1; return '%s_%d' % (base, self.uid)
    def text(self): return '\n'.join(self.out) + '\n'

def interleave(main, fill, start=0, per=1, step=1):
    out = []; fi = 0
    for k, m in enumerate(main):
        out.append(m)
        if k >= start and (k - start) % step == 0:
            for _ in range(per):
                if fi < len(fill): out.append(fill[fi]); fi += 1
    out.extend(fill[fi:])
    return out

def spread(main, fill, lo=0, hi=None):
    hi = len(main) if hi is None else hi
    n = hi - lo; out = []; fi = 0
    for k, m in enumerate(main):
        out.append(m)
        if lo <= k < hi:
            tgt = ((k - lo + 1) * len(fill) + n - 1) // n
            while fi < min(tgt, len(fill)): out.append(fill[fi]); fi += 1
    out.extend(fill[fi:])
    return out

def v(i, n=1): return 'v%d' % i if n == 1 else 'v[%d:%d]' % (i, i + n - 1)
def a(i, n=1): return 'a%d' % i if n == 1 else 'a[%d:%d]' % (i, i + n - 1)
def s(i, n=1): return 's%d' % i if n == 1 else 's[%d:%d]' % (i, i + n - 1)
import struct
def f32(x): return '0x%08x' % struct.unpack('<I', struct.pack('<f', x))[0]
```

```python
XHSZ = 2048 * 640 * 2
O_CNT = 0
O_SS0 = 0x10000
O_SS2 = 0x12000
O_STAMP = 0x20000
O_XH = [0x40000 + i * XHSZ for i in range(4)]
O_W1 = O_XH[3] + XHSZ
O_WD = O_W1 + 3932160
O_WT = O_WD + 1966080
O_FT = O_WT + 1966080
O_H = [O_FT + 819200, O_FT + 819200 + 6291456]
O_FLAG = 0x8000
WSSZ = 268435456
```

```python
import sys, math
from asmlib import *

KN = 'interleave_layers__spectral_gfnet__glu_gated_reglu__prompt_kernel'
class Cfg:
    stop = 99
    stamps = False
cfg = Cfg()

from layout import *

ALPHA = math.sqrt(2.0 / 640)
C1, C2 = math.cos(2 * math.pi / 5), math.cos(4 * math.pi / 5)
S1, S2 = math.sin(2 * math.pi / 5), math.sin(4 * math.pi / 5)

sB = 2; sW = 3
WS = 's[8:11]'; OUT = 's[12:15]'
pX, pWR, pWI, pWG, pWU, pWD, pOUT, pDBG, pWS = 16, 18, 20, 24, 26, 28, 30, 32, 34
SA = 40; SBb = 44
sT = [48 + i for i in range(16)]
sPB, sFB, sHALF, sCB = 64, 65, 66, 67
sLAYER = 68
sXIN, sXOUT, sSS, sH = 69, 70, 71, 72
sKA, sKB = 73, 74
sMSK = [75, 76, 77, 78]
sMUL = [79, 80, 81, 82]
sK = [83 + i for i in range(8)]
sGUARD = 91
sBAR = 92
sSTAMP = [94, 95]; sSTI = 96
sFLG = 97

def T(text, tag): return lambda A: A(text, tag)

def srd(A, d, p, size):
    A('s_mov_b32 s%d, s%d' % (d, p)); A('s_mov_b32 s%d, s%d' % (d + 1, p + 1))
    A('s_mov_b32 s%d, %d' % (d + 2, size)); A('s_mov_b32 s%d, 0x00020000' % (d + 3))

def stamp(A, vt=14):
    if not cfg.stamps: return
    L = A.newlabel('L_st')
    A('s_cmp_eq_u32 s%d, 0' % sW); A('s_cbranch_scc0 ' + L)
    A('s_memrealtime s[94:95]'); A('s_waitcnt lgkmcnt(0)')
    A('v_mov_b32 v%d, s94' % vt); A('v_mov_b32 v%d, s%d' % (vt + 1, sSTI))
    A('s_mov_b64 exec, 1')
    A.raw('    buffer_store_dword v%d, v%d, %s, 0 offen' % (vt, vt + 1, WS))
    A('s_mov_b64 exec, -1')
    A.label(L)
    A('s_add_u32 s%d, s%d, 4' % (sSTI, sSTI))

def lane_idx(A, vi, vg):
    A('v_and_b32 v%d, 15, v0' % vi); A('v_lshrrev_b32 v%d, 4, v0' % vg)

def poll(A, srdname, soff, voff, cmp_ins, vt, exec_mask='1'):
    L = A.newlabel('L_poll'); D = A.newlabel('L_polld')
    A('s_mov_b32 s%d, 0x20000' % sGUARD)
    A('s_mov_b64 exec, %s' % exec_mask)
    A.label(L)
    A('buffer_load_dword v%d, v%d, %s, %s offen sc1' % (vt, voff, srdname, soff))
    A('s_waitcnt vmcnt(0)')
    A(cmp_ins.format(v='v%d' % vt))
    A('s_cbranch_vccz ' + D)
    A('s_sub_u32 s%d, s%d, 1' % (sGUARD, sGUARD))
    A('s_cmp_eq_u32 s%d, 0' % sGUARD)
    A('s_cbranch_scc0 ' + L)
    A.label(D)
    A('s_mov_b64 exec, -1')

def bar_arrive(A, narr, vt=10, check_ready=False):
    A('s_waitcnt vmcnt(0) lgkmcnt(0)'); A('s_barrier')
    L = A.newlabel('L_arr')
    A('s_cmp_eq_u32 s%d, 0' % sW); A('s_cbranch_scc0 ' + L)
    A('v_mov_b32 v%d, 0' % (vt + 1))
    if check_ready:
        srd(A, SA, pDBG, 256)
        poll(A, 's[40:43]', '0', vt + 1, 'v_cmp_eq_u32 vcc, 0, {v}', vt)
    A('s_and_b32 s%d, s%d, 15' % (sT[0], sB)); A('s_lshl_b32 s%d, s%d, 8' % (sT[0], sT[0]))
    A('s_add_u32 s%d, s%d, s%d' % (sT[0], sT[0], sBAR))
    A('v_mov_b32 v%d, 1' % vt)
    A('s_mov_b64 exec, 1')
    A('buffer_atomic_add v%d, v%d, %s, s%d offen sc0 sc1' % (vt, vt + 1, WS, sT[0]))
    A('s_waitcnt vmcnt(0)')
    A('v_readfirstlane_b32 s%d, v%d' % (sT[1], vt))
    A('s_mov_b64 exec, -1')
    A('s_cmp_eq_u32 s%d, %d' % (sT[1], narr // 16 - 1)); A('s_cbranch_scc0 ' + L)
    A('v_mov_b32 v%d, 1' % vt); A('v_lshlrev_b32 v%d, 8, v0' % (vt + 1))
    A('s_add_u32 s%d, s%d, 4096' % (sT[0], sBAR))
    A('s_mov_b64 exec, 0xff')
    A('buffer_atomic_add v%d, v%d, %s, s%d offen sc1' % (vt, vt + 1, WS, sT[0]))
    A('s_mov_b64 exec, -1')
    A.label(L); A.collapse()

def bar_wait(A, vt=10):
    L = A.newlabel('L_wait')
    A('s_cmp_eq_u32 s%d, 0' % sW); A('s_cbranch_scc0 ' + L)
    A('s_and_b32 s%d, s%d, 7' % (sT[0], sB)); A('s_lshl_b32 s%d, s%d, 8' % (sT[0], sT[0]))
    A('s_add_u32 s%d, s%d, s%d' % (sT[0], sT[0], sBAR)); A('s_add_u32 s%d, s%d, 4096' % (sT[0], sT[0]))
    A('v_mov_b32 v%d, 0' % (vt + 1))
    saved = list(A.vm)
    poll(A, WS, 's%d' % sT[0], vt + 1, 'v_cmp_gt_u32 vcc, 16, {v}', vt)
    A.vm = saved
    A.label(L); A.collapse()
    A('s_barrier')

def bar_next(A): A('s_add_u32 s%d, s%d, 0x1800' % (sBAR, sBAR))

def p0_consts(A, PC, vi, vg, tmp):
    th, st, st25, c0, c1 = tmp, tmp + 1, tmp + 2, tmp + 3, tmp + 4
    L = []
    L += ['s_lshl_b32 s%d, s%d, 4' % (sT[0], sW), 'v_add_u32 v%d, s%d, v%d' % (st, sT[0], vi),
          'v_cmp_eq_u32 s[62:63], 0, v%d' % st,
          'v_mul_u32_u24 v%d, 77, v%d' % (st, st), 'v_and_b32 v%d, 127, v%d' % (st, st), 'v_cvt_f32_u32 v%d, v%d' % (st, st),
          'v_mul_f32 v%d, %s, v%d' % (st, f32(1 / 128), st), 'v_mul_f32 v%d, %s, v%d' % (st25, f32(25.0), st),
          'v_lshlrev_b32 v%d, 3, v%d' % (th, vg), 'v_cvt_f32_u32 v%d, v%d' % (th, th), 'v_mul_f32 v%d, v%d, v%d' % (th, th, st),
          'v_mov_b32 v%d, 0xbf803f80' % (tmp + 7)]
    for kk in range(4):
        for d in range(4):
            L += ['v_cos_f32 v%d, v%d' % (c0, th), 'v_sin_f32 v%d, -v%d' % (c0 + 2, th), 'v_add_f32 v%d, v%d, v%d' % (th, th, st),
                  'v_cos_f32 v%d, v%d' % (c1, th), 'v_sin_f32 v%d, -v%d' % (c1 + 2, th),
                  'v_add_f32 v%d, v%d, v%d' % (th, th, st25 if d == 3 else st),
                  'v_cvt_pk_bf16_f32 v%d, v%d, v%d' % (PC + kk * 8 + d, c0, c1),
                  'v_cvt_pk_bf16_f32 v%d, v%d, v%d' % (PC + kk * 8 + 4 + d, c0 + 2, c1 + 2),
                  'v_cndmask_b32 v%d, v%d, v%d, s[62:63]' % (PC + kk * 8 + 4 + d, PC + kk * 8 + 4 + d, tmp + 7)]
    return L

def dft5_consts(A):
    for r, x in zip(sK, (ALPHA, ALPHA * C1, ALPHA * C2, -ALPHA * S1, -ALPHA * S2, ALPHA * S1)):
        A('s_mov_b32 s%d, %s' % (r, f32(x)))

def dft5(ar, br, lam_re, lam_im, mu, tmp):
    L = []
    aL, c1, c2, ms1, ms2, s1 = ['s%d' % r for r in sK[:6]]
    t1, t2, t3, t4, z = tmp, tmp + 1, tmp + 2, tmp + 3, tmp + 4
    for x, lam in ((ar, lam_re), (br, lam_im)):
        L += ['v_add_f32 v%d, v%d, v%d' % (t1, x[1], x[4]), 'v_add_f32 v%d, v%d, v%d' % (t2, x[2], x[3]),
              'v_sub_f32 v%d, v%d, v%d' % (t3, x[1], x[4]), 'v_sub_f32 v%d, v%d, v%d' % (t4, x[2], x[3]),
              'v_mul_f32 v%d, %s, v%d' % (z, aL, x[0]),
              'v_add_f32 v%d, v%d, v%d' % (x[0], x[0], t1),
              'v_fma_f32 v%d, v%d, %s, v%d' % (x[1], t1, c1, z), 'v_fma_f32 v%d, v%d, %s, v%d' % (x[2], t1, c2, z),
              'v_mul_f32 v%d, %s, v%d' % (x[4], ms1, t3), 'v_mul_f32 v%d, %s, v%d' % (x[3], ms2, t3),
              'v_add_f32 v%d, v%d, v%d' % (x[0], x[0], t2),
              'v_fmac_f32 v%d, %s, v%d' % (x[1], c2, t2), 'v_fmac_f32 v%d, %s, v%d' % (x[2], c1, t2),
              'v_fmac_f32 v%d, %s, v%d' % (x[4], ms2, t4), 'v_fmac_f32 v%d, %s, v%d' % (x[3], s1, t4),
              'v_mul_f32 v%d, %s, v%d' % (x[0], lam, x[0])]
    re = [ar[0], None, None, None, None]; im = [br[0], None, None, None, None]
    for (p, q, kp, kq, tt) in ((1, 4, 1, 4, t1), (2, 3, 2, 3, t3)):
        L += ['v_fma_f32 v%d, -v%d, %s, v%d' % (tt, br[q], mu, ar[p]), 'v_fma_f32 v%d, v%d, %s, v%d' % (tt + 1, br[p], mu, ar[q]),
              'v_fma_f32 v%d, v%d, %s, v%d' % (br[q], ar[p], mu, br[q]), 'v_fma_f32 v%d, -v%d, %s, v%d' % (br[p], ar[q], mu, br[p]),
              'v_mov_b32 v%d, v%d' % (ar[p], tt), 'v_mov_b32 v%d, v%d' % (ar[q], tt + 1)]
        re[kp] = ar[p]; im[kp] = ar[q]; re[kq] = br[q]; im[kq] = br[p]
    return L, re, im

def reduce16x8(vals, vi, tmpmask='s[60:61]'):
    L = []
    for j in range(4):
        L += ['v_add_f32_dpp v%d, v%d, v%d row_ror:8 row_mask:0xf bank_mask:0x3' % (vals[j], vals[j], vals[j])]
    for j in range(4):
        L += ['v_add_f32_dpp v%d, v%d, v%d row_ror:8 row_mask:0xf bank_mask:0xc' % (vals[j], vals[j + 4], vals[j + 4])]
    for j in range(2):
        L += ['v_add_f32_dpp v%d, v%d, v%d row_ror:12 row_mask:0xf bank_mask:0x5' % (vals[j], vals[j], vals[j])]
    for j in range(2):
        L += ['v_add_f32_dpp v%d, v%d, v%d row_ror:4 row_mask:0xf bank_mask:0xa' % (vals[j], vals[j + 2], vals[j + 2])]
    for qp in ('[1,0,3,2]', '[2,3,0,1]'):
        for j in range(2):
            L += ['v_add_f32_dpp v%d, v%d, v%d quad_perm:%s row_mask:0xf bank_mask:0xf' % (vals[j], vals[j], vals[j], qp)]
    L += ['s_mov_b32 vcc_lo, 0xaaaaaaaa', 's_mov_b32 vcc_hi, 0xaaaaaaaa',
          'v_cndmask_b32 v%d, v%d, v%d, vcc' % (vals[0], vals[0], vals[1])]
    return L

def red_idx(A, dst, vi, vg, tmp):
    A('v_lshrrev_b32 v%d, 1, v%d' % (tmp, vi)); A('v_and_b32 v%d, 6, v%d' % (tmp, tmp))
    A('v_and_b32 v%d, 1, v%d' % (dst, vi)); A('v_or_b32 v%d, v%d, v%d' % (dst, dst, tmp))
    A('v_lshl_add_u32 v%d, v%d, 3, v%d' % (dst, vg, dst)); A('v_lshlrev_b32 v%d, 2, v%d' % (dst, dst))

MF = 'v_mfma_f32_16x16x32_bf16'
def mfma(d, x, y, c=None): return '%s %s, %s, %s, %s' % (MF, d, x, y, d if c is None else c)

def path_x(A, is_x):
    u = sT[8]
    vi, vg = 1, 2
    PC = 16; ST = 48; ACC = 96; FB = 176; TMP = 4
    lane_idx(A, vi, vg)
    srd(A, SA, pX if is_x else pWD, XHSZ if is_x else 1966080)
    A('v_lshrrev_b32 v4, 2, v%d' % vi); A('v_and_b32 v5, 3, v%d' % vi); A('v_lshl_add_u32 v4, v4, 3, v5')
    A('s_and_b32 s%d, s%d, 1' % (sT[0], sW)); A('s_lshl_b32 s%d, s%d, 2' % (sT[0], sT[0]))
    A('v_add_u32 v4, s%d, v4' % sT[0])
    if is_x:
        A('s_and_b32 s%d, s%d, 1' % (sT[1], u)); A('s_lshl_b32 s%d, s%d, 10' % (sT[1], sT[1]))
        A('s_lshr_b32 s%d, s%d, 1' % (sT[2], u)); A('s_add_u32 s%d, s%d, s%d' % (sT[1], sT[1], sT[2]))
        A('v_lshlrev_b32 v4, 5, v4')
    else:
        A('s_lshl_b32 s%d, s%d, 5' % (sT[1], u))
    A('v_add_u32 v4, s%d, v4' % sT[1])
    A('v_mul_u32_u24 v4, 1280, v4'); A('v_lshl_add_u32 v4, v%d, 4, v4' % vg)
    A('s_lshr_b32 s%d, s%d, 1' % (sT[3], sW)); A('s_lshl_b32 s%d, s%d, 7' % (sT[2], sT[3]))
    for k in range(2):
        for b in range(5):
            A('buffer_load_dwordx4 %s, v4, s[40:43], s%d offen offset:%d' % (v(ST + (k * 5 + b) * 4, 4), sT[2], b * 256 + k * 64))
    yield 'loads'
    A(p0_consts(A, PC, vi, vg, TMP))
    dft5_consts(A)
    MU, LAM = 12, 13
    A('v_mov_b32 v%d, 1.0' % MU); A('v_mov_b32 v4, 0'); A('v_cndmask_b32 v%d, v%d, v4, s[62:63]' % (MU, MU))
    A('v_mov_b32 v%d, %s' % (LAM, f32(ALPHA))); A('v_mov_b32 v4, %s' % f32(ALPHA / math.sqrt(2)))
    A('v_cndmask_b32 v%d, v%d, v4, s[62:63]' % (LAM, LAM))
    ROT = 88
    A('s_and_b32 s%d, s%d, 1' % (sT[0], sW)); A('s_lshl_b32 s%d, s%d, 2' % (sT[0], sT[0])); A('s_lshr_b32 s%d, s%d, 1' % (sT[3], sW))
    A('s_lshl_b32 s%d, s%d, 3' % (sT[4], sT[3])); A('v_add_u32 v4, s%d, v%d' % (sT[4], vg))
    A('s_lshl_b32 s%d, s%d, 1' % (sT[5], sT[3])); A('s_add_u32 s%d, s%d, s%d' % (sT[5], sT[5], sT[0])); A('s_mul_i32 s%d, s%d, 5120' % (sT[5], sT[5]))
    A('v_lshlrev_b32 v6, 4, v0'); A('v_add_u32 v6, s%d, v6' % sT[5])
    for x in range(5):
        A('v_add_u32 v5, %d, v4' % x); A('v_mul_u32_u24 v7, 52, v5'); A('v_lshrrev_b32 v7, 8, v7')
        A('v_mul_u32_u24 v7, 5, v7'); A('v_sub_u32 v5, v5, v7'); A('v_lshl_add_u32 v%d, v5, 10, v6' % (ROT + x))
    A('s_mov_b32 s%d, 0xffff' % sT[6])
    for k in range(2):
        for nu in range(5):
            dst = FB + ((k * 5 + nu) % 4) * 4
            for tau in range(4):
                lo = ST + (k * 5 + (nu + tau) % 5) * 4 + tau; hi = ST + (k * 5 + (nu + tau + 3) % 5) * 4 + tau
                A('v_bfi_b32 v%d, s%d, v%d, v%d' % (dst + tau, sT[6], lo, hi))
            A('ds_write_b128 v%d, %s offset:%d' % (ROT + (nu + 4 * k) % 5, v(dst, 4), k * 5120))
    A('s_waitcnt lgkmcnt(0)'); A('s_barrier')
    A('v_lshlrev_b32 v4, 4, v0')
    acc = lambda t, n1, cs: ACC + ((t * 5 + n1) * 2 + cs) * 4
    seq = [(t, kk, n1) for t in range(2) for kk in range(4) for n1 in range(5)]
    NB = 8
    rd = lambda k: 'ds_read_b128 %s, v4 offset:%d' % (v(FB + (k % NB) * 4, 4), ((seq[k][0] * 4 + seq[k][1]) * 5 + seq[k][2]) * 1024)
    for k in range(NB - 1): A(rd(k))
    for k, (t, kk, n1) in enumerate(seq):
        if k + NB - 1 < len(seq): A(rd(k + NB - 1))
        for cs in range(2):
            A(mfma(v(acc(t, n1, cs), 4), v(FB + (k % NB) * 4, 4), v(PC + kk * 8 + cs * 4, 4), '0' if kk == 0 else None))
    RE = {}; IM = {}
    for t in range(2):
        for r in range(4):
            L, re, im = dft5([acc(t, n, 0) + r for n in range(5)], [acc(t, n, 1) + r for n in range(5)], 'v%d' % LAM, 'v%d' % LAM, 'v%d' % MU, TMP)
            A(L); RE[t, r] = re; IM[t, r] = im
    if is_x:
        A('v_lshlrev_b32 v4, 7, v%d' % vi); A('v_lshl_add_u32 v4, v%d, 4, v4' % vg)
        A('s_mul_i32 s%d, s%d, 40960' % (sT[0], u)); A('s_mul_i32 s%d, s%d, 10240' % (sT[1], sW))
        A('s_add_u32 s%d, s%d, s%d' % (sT[0], sT[0], sT[1])); A('s_add_u32 s%d, s%d, %d' % (sT[0], sT[0], O_XH[0]))
        stepk, stepc = 2048, 64
    else:
        A('v_lshlrev_b32 v4, 4, v0')
        A('s_mul_i32 s%d, s%d, 480' % (sT[0], sW)); A('s_add_u32 s%d, s%d, s%d' % (sT[0], sT[0], u)); A('s_lshl_b32 s%d, s%d, 10' % (sT[0], sT[0]))
        A('s_add_u32 s%d, s%d, %d' % (sT[0], sT[0], O_WD))
        stepk, stepc = 98304, 49152
    n = 0
    for k1 in range(5):
        for c in range(2):
            src = RE if c == 0 else IM
            dst = FB + (n % 8) * 4; n += 1
            for t in range(2):
                for h in range(2):
                    A('v_cvt_pk_bf16_f32 v%d, v%d, v%d' % (dst + t * 2 + h, src[t, 2 * h][k1], src[t, 2 * h + 1][k1]))
            A('s_add_u32 s%d, s%d, %d' % (sT[1], sT[0], k1 * stepk + c * stepc))
            A('buffer_store_dwordx4 %s, v4, %s, s%d offen sc1' % (v(dst, 4), WS, sT[1]))
    if is_x:
        SQ = ST
        for t in range(2):
            for r in range(4):
                d = SQ + t * 4 + r
                A('v_mul_f32 v%d, v%d, v%d' % (d, RE[t, r][0], MU)); A('v_mul_f32 v%d, v%d, v%d' % (d, d, RE[t, r][0]))
                for k1 in range(5):
                    if k1: A('v_fmac_f32 v%d, v%d, v%d' % (d, RE[t, r][k1], RE[t, r][k1]))
                    A('v_fmac_f32 v%d, v%d, v%d' % (d, IM[t, r][k1], IM[t, r][k1]))
        A(reduce16x8([SQ + j for j in range(8)], vi))
        red_idx(A, 5, vi, vg, 6)
        A('s_lshl_b32 s%d, s%d, 7' % (sT[0], sW)); A('v_add_u32 v6, s%d, v5' % sT[0])
        A('ds_write_b32 v6, v%d offset:40960' % SQ)
        A('s_waitcnt lgkmcnt(0)'); A('s_barrier')
        Lb = A.newlabel('L_ss')
        A('s_cmp_eq_u32 s%d, 0' % sW); A('s_cbranch_scc0 ' + Lb)
        A('v_lshlrev_b32 v5, 2, v0'); A('v_and_b32 v5, 127, v5')
        for w in range(4): A('ds_read_b32 v%d, v5 offset:%d' % (6 + w, 40960 + w * 128))
        A('v_add_f32 v6, v6, v7'); A('v_add_f32 v8, v8, v9'); A('v_add_f32 v6, v6, v8')
        A('s_lshl_b32 s%d, s%d, 7' % (sT[0], u)); A('s_add_u32 s%d, s%d, %d' % (sT[0], sT[0], O_SS0))
        A('s_mov_b32 exec_hi, 0')
        A('buffer_store_dword v6, v5, %s, s%d offen sc1' % (WS, sT[0]))
        A('s_mov_b64 exec, -1')
        A.label(Lb); A.collapse()

def path_w(A):
    u = sT[8]
    vi, vg = 1, 2
    PC = 16; ACC = 96; FB = 176; TMP = 4; ROT = 88
    lane_idx(A, vi, vg)
    srd(A, SA, pWG, 1966080); srd(A, SBb, pWU, 1966080)
    A('v_lshrrev_b32 v4, 3, v0'); A('v_and_b32 v4, 3, v4'); A('v_lshlrev_b32 v4, 3, v4')
    A('v_lshrrev_b32 v5, 5, v0'); A('v_lshl_add_u32 v4, v5, 2, v4')
    A('v_lshrrev_b32 v5, 1, v0'); A('v_and_b32 v5, 3, v5'); A('v_add_u32 v4, v4, v5')
    A('v_mul_u32_u24 v5, 3, v4'); A('v_add_u32 v5, s%d, v5' % sW)
    A('s_lshl_b32 s%d, s%d, 5' % (sT[0], sW)); A('v_add_u32 v4, s%d, v4' % sT[0])
    A('v_and_b32 v6, 1, v0'); A('v_lshlrev_b32 v6, 4, v6')
    A('s_lshl_b32 s%d, s%d, 5' % (sT[1], u))
    A('s_lshl_b32 s%d, s%d, 10' % (sT[2], sW))
    for n1 in range(5):
        A('v_add_u32 v7, %d, v5' % n1); A('v_mul_u32_u24 v8, 205, v7'); A('v_lshrrev_b32 v8, 10, v8')
        A('v_mul_u32_u24 v8, 5, v8'); A('v_sub_u32 v7, v7, v8'); A('v_lshl_add_u32 v7, v7, 7, v4')
        A('v_mul_u32_u24 v7, 3072, v7'); A('v_add_u32 v8, v7, v6'); A('v_xor_b32 v9, 16, v8')
        A('s_add_u32 m0, s%d, %d' % (sT[2], n1 * 4096))
        A('buffer_load_dwordx4 v8, s[40:43], s%d offen lds' % sT[1])
        A('s_add_u32 m0, s%d, %d' % (sT[2], 20480 + n1 * 4096))
        A('buffer_load_dwordx4 v9, s[44:47], s%d offen lds' % sT[1], 'dma')
    yield 'loads'
    A(p0_consts(A, PC, vi, vg, TMP))
    dft5_consts(A)
    MU, LRE, LIM = 12, 13, 14
    A('v_add_u32 v4, s%d, v%d' % (sW, vg)); A('v_cmp_eq_u32 vcc, 0, v4')
    A('v_mov_b32 v%d, 1.0' % MU); A('v_mov_b32 v4, 0'); A('v_cndmask_b32 v%d, v%d, v4, vcc' % (MU, MU))
    A('v_mov_b32 v5, %s' % f32(ALPHA)); A('v_cndmask_b32 v%d, v5, v4, vcc' % LRE)
    A('v_mov_b32 v4, %s' % f32(ALPHA / math.sqrt(2))); A('v_cndmask_b32 v%d, v5, v4, vcc' % LIM)
    A('v_lshrrev_b32 v4, 2, v0'); A('v_lshlrev_b32 v4, 5, v4')
    A('v_and_b32 v5, 1, v0'); A('v_lshl_add_u32 v4, v5, 3, v4')
    A('v_lshrrev_b32 v5, 1, v0'); A('v_and_b32 v5, 1, v5'); A('v_mul_u32_u24 v5, 20496, v5'); A('v_add_u32 v%d, v4, v5' % ROT)
    A('v_xor_b32 v%d, 16, v%d' % (ROT + 1, ROT))
    A.wait_vm('dma'); A('s_barrier')
    acc = lambda t, n1, cs: ACC + ((t * 5 + n1) * 2 + cs) * 4
    seq = [(t, kk, n1) for t in range(2) for kk in range(4) for n1 in range(5)]
    NB = 6
    def rd(k):
        t, kk, n1 = seq[k]
        return ['ds_read_b64_tr_b16 %s, v%d offset:%d' % (v(FB + (k % NB) * 4 + 2 * h, 2), ROT + t, (n1 * 4 + kk) * 1024 + h * 512) for h in range(2)]
    for k in range(NB - 1): A(rd(k))
    for k, (t, kk, n1) in enumerate(seq):
        if k + NB - 1 < len(seq): A(rd(k + NB - 1))
        for cs in range(2):
            A(mfma(v(acc(t, n1, cs), 4), v(PC + kk * 8 + cs * 4, 4), v(FB + (k % NB) * 4, 4), '0' if kk == 0 else None))
    A('v_lshlrev_b32 v15, 4, v0')
    n = 0
    for t in range(2):
        RE = {}; IM = {}
        for r in range(4):
            L, re, im = dft5([acc(t, n_, 0) + r for n_ in range(5)], [acc(t, n_, 1) + r for n_ in range(5)],
                             'v%d' % LRE if r == 0 else 's%d' % sK[0], 'v%d' % LIM if r == 0 else 's%d' % sK[0], 'v%d' % MU if r == 0 else '1.0', TMP)
            A(L); RE[r] = re; IM[r] = im
        A('s_lshl_b32 s%d, s%d, 1' % (sT[0], u)); A('s_add_u32 s%d, s%d, %d' % (sT[0], sT[0], t))
        A('s_mul_i32 s%d, s%d, 171' % (sT[1], sT[0])); A('s_lshr_b32 s%d, s%d, 9' % (sT[1], sT[1]))
        A('s_mul_i32 s%d, s%d, 57' % (sT[1], sT[1])); A('s_add_u32 s%d, s%d, s%d' % (sT[0], sT[0], sT[1]))
        A('s_mul_i32 s%d, s%d, 15' % (sT[1], sW)); A('s_add_u32 s%d, s%d, s%d' % (sT[0], sT[0], sT[1]))
        A('s_lshl_b32 s%d, s%d, 10' % (sT[0], sT[0])); A('s_add_u32 s%d, s%d, %d' % (sT[0], sT[0], O_W1))
        for k1 in range(5):
            dst = FB + (n % 8) * 4; n += 1
            for r in range(4): A('v_cvt_pk_bf16_f32 v%d, v%d, v%d' % (dst + r, RE[r][k1], IM[r][k1]))
            A('s_add_u32 s%d, s%d, %d' % (sT[1], sT[0], k1 * 3072))
            A('buffer_store_dwordx4 %s, v15, %s, s%d offen sc1' % (v(dst, 4), WS, sT[1]))

def path_t(A):
    u = sT[8]
    vi, vg = 1, 2
    lane_idx(A, vi, vg)
    srd(A, SA, pWD, 1966080)
    A('s_mul_i32 s%d, s%d, 40960' % (sT[0], u)); A('v_lshlrev_b32 v15, 4, v0'); A('v_add_u32 v4, s%d, v15' % sT[0])
    A('s_mul_i32 s%d, s%d, 10240' % (sT[1], sW))
    for k in range(10):
        if k % 4 == 0: A('s_add_u32 m0, s%d, %d' % (sT[1], k * 1024))
        A('buffer_load_dwordx4 v4, s[40:43], m0 offen offset:%d lds' % ((k % 4) * 1024), 'dma')
    Ls = A.newlabel('L_noft')
    A('s_cmp_lt_u32 s%d, 40' % u); A('s_cbranch_scc0 ' + Ls)
    A('s_lshl_b32 s%d, s%d, 4' % (sT[0], u)); A('v_add_u32 v4, s%d, v%d' % (sT[0], vi))
    A('v_add_u32 v5, s%d, v%d' % (sW, vg)); A('v_cmp_eq_u32 vcc, 0, v5')
    A('v_mul_u32_u24 v5, 77, v4'); A('v_and_b32 v5, 127, v5')
    A('s_lshl_b32 s%d, s%d, 4' % (sT[0], sW)); A('v_lshl_add_u32 v6, v%d, 2, s%d' % (vg, sT[0]))
    TH = 16
    for jj in range(4):
        A('v_add_u32 v7, %d, v6' % jj); A('v_mul_u32_u24 v7, v7, v5'); A('v_and_b32 v7, 127, v7'); A('v_cvt_f32_u32 v7, v7')
        A('v_mul_f32 v%d, %s, v7' % (TH + jj, f32(1 / 128)))
    A('v_and_b32 v7, 1, v4'); A('v_cvt_f32_u32 v7, v7'); A('v_mul_f32 v7, 0.5, v7'); A('v_add_f32 v7, %s, v7' % f32(-0.25))
    A('v_cndmask_b32 v%d, v%d, v7, vcc' % (TH + 4, TH))
    A('v_mov_b32 v7, %s' % f32(ALPHA)); A('v_mov_b32 v8, %s' % f32(ALPHA / math.sqrt(2))); A('v_cndmask_b32 v%d, v7, v8, vcc' % (TH + 5))
    A('v_lshlrev_b32 v7, 1, v4'); A('v_mul_u32_u24 v8, 13108, v7'); A('v_lshrrev_b32 v8, 16, v8'); A('v_mul_u32_u24 v8, 5, v8'); A('v_sub_u32 v7, v7, v8')
    A('v_cvt_f32_u32 v7, v7'); A('v_mul_f32 v%d, %s, v7' % (TH + 6, f32(0.2)))
    A('s_mul_i32 s%d, s%d, 20' % (sT[0], u)); A('s_mul_i32 s%d, s%d, 5' % (sT[2], sW)); A('s_add_u32 s%d, s%d, s%d' % (sT[0], sT[0], sT[2]))
    A('s_lshl_b32 s%d, s%d, 10' % (sT[0], sT[0])); A('s_add_u32 s%d, s%d, %d' % (sT[0], sT[0], O_FT))
    A('s_mov_b32 s%d, %s' % (sT[3], f32(ALPHA)))
    for k1 in range(5):
        dst = 32 + k1 * 4
        A('v_mul_f32 v3, %s, v%d' % (f32(float(k1)), TH + 6))
        for jj in range(4):
            tre = TH + 4 if (jj == 0 and k1 >= 3) else TH + jj
            tim = TH + 4 if (jj == 0 and k1 in (0, 3, 4)) else TH + jj
            lam = 'v%d' % (TH + 5) if (jj == 0 and k1 == 0) else 's%d' % sT[3]
            A('v_add_f32 v7, v3, v%d' % tre); A('v_add_f32 v8, v3, v%d' % tim)
            A('v_cos_f32 v7, v7'); A('v_sin_f32 v8, -v8')
            A('v_mul_f32 v7, %s, v7' % lam); A('v_mul_f32 v8, %s, v8' % lam)
            A('v_cvt_pk_bf16_f32 v%d, v7, v8' % (dst + jj))
        if k1 == 4: A('s_add_u32 s%d, s%d, 4096' % (sT[0], sT[0]))
        A.raw('    buffer_store_dwordx4 %s, v15, %s, s%d offen offset:%d sc1' % (v(dst, 4), WS, sT[0], (k1 % 4) * 1024))
    A.label(Ls)
    A('s_waitcnt vmcnt(0)'); A('s_barrier')
    A('v_lshrrev_b32 v4, 2, v%d' % vi); A('v_lshl_add_u32 v4, v%d, 3, v4' % vg); A('v_mul_u32_u24 v4, 1280, v4')
    A('v_and_b32 v5, 3, v0'); A('v_lshl_add_u32 v4, v5, 3, v4')
    A('s_mul_i32 s%d, s%d, 320' % (sT[0], sW)); A('v_add_u32 v4, s%d, v4' % sT[0])
    for k in range(10):
        for h in range(2): A('ds_read_b64_tr_b16 %s, v4 offset:%d' % (v(64 + k * 4 + 2 * h, 2), k * 32 + h * 5120))
    A('s_mul_i32 s%d, s%d, 480' % (sT[0], sW)); A('s_add_u32 s%d, s%d, s%d' % (sT[0], sT[0], u)); A('s_lshl_b32 s%d, s%d, 10' % (sT[0], sT[0]))
    A('s_add_u32 s%d, s%d, %d' % (sT[0], sT[0], O_WT))
    for k in range(10):
        A('buffer_store_dwordx4 %s, v15, %s, s%d offen sc1' % (v(64 + k * 4, 4), WS, sT[0]))
        A('s_add_u32 s%d, s%d, 49152' % (sT[0], sT[0]))

def w_gather(A):
    j = sT[9]
    A('s_and_b32 s%d, s%d, 7' % (j, sB)); A('s_mul_i32 s%d, s%d, 20' % (j, j)); A('s_lshr_b32 s%d, s%d, 3' % (sT[0], sB)); A('s_add_u32 s%d, s%d, s%d' % (j, j, sT[0]))
    srd(A, SA, pWR, 1314816); srd(A, SBb, pWI, 1314816)
    A('v_and_b32 v10, 15, v0'); A('v_lshrrev_b32 v11, 4, v0'); A('v_lshl_add_u32 v10, v11, 8, v10')
    A('s_lshl_b32 s%d, s%d, 4' % (sT[0], sW)); A('v_add_u32 v10, s%d, v10' % sT[0]); A('v_mul_u32_u24 v10, 642, v10')
    A('s_lshl_b32 s%d, s%d, 2' % (sT[0], j)); A('s_add_u32 s%d, s%d, 2' % (sT[0], sT[0]))
    for t in range(2):
        for r in range(4):
            A('s_add_u32 s%d, s%d, %d' % (sT[1], sT[0], (16 * t + r) * 41088))
            A('buffer_load_dword a%d, v10, s[40:43], s%d offen' % (240 + t * 4 + r, sT[1]))
            A('buffer_load_dword a%d, v10, s[44:47], s%d offen' % (248 + t * 4 + r, sT[1]))
    for X in range(2):
        kp, a_, k, cj, t0 = sT[0], sT[1], sT[2], sT[3], sT[4]
        A('s_lshl_b32 s%d, s%d, 1' % (kp, j)); A('s_add_u32 s%d, s%d, %d' % (kp, kp, 1 + X))
        A('s_and_b32 s%d, s%d, 127' % (a_, kp))
        A('s_cmp_gt_u32 s%d, 64' % a_); A('s_cselect_b32 s%d, 1, 0' % cj)
        A('s_cmp_eq_u32 s%d, 128' % kp); A('s_cselect_b32 s%d, 1, s%d' % (cj, cj))
        A('s_cmp_eq_u32 s%d, 192' % kp); A('s_cselect_b32 s%d, 1, s%d' % (cj, cj))
        A('s_sub_u32 s%d, 640, s%d' % (k, kp))
        A('s_cmp_eq_u32 s%d, 1' % cj); A('s_cselect_b32 s%d, s%d, s%d' % (k, k, kp))
        A('s_cselect_b32 s%d, 0x80008000, 0' % sMSK[2 * X + 1])
        A('s_cselect_b32 s%d, %s, %s' % (sMUL[2 * X + 1], '0x80000000', '0'))
        A('s_or_b32 s%d, s%d, %s' % (sMUL[2 * X + 1], sMUL[2 * X + 1], f32(1 / 2048)))
        A('s_cmp_eq_u32 s%d, 320' % kp)
        A('s_cselect_b32 s%d, 0, -1' % sMSK[2 * X]); A('s_cselect_b32 s%d, 0, %s' % (sMUL[2 * X], f32(1 / 2048)))
        A('s_mul_i32 s%d, s%d, 13108' % (t0, k)); A('s_lshr_b32 s%d, s%d, 16' % (t0, t0)); A('s_mul_i32 s%d, s%d, 5' % (t0, t0)); A('s_sub_u32 s%d, s%d, s%d' % (t0, k, t0))
        A('s_bfe_u32 s%d, s%d, 0x20004' % (a_, k)); A('s_mul_i32 s%d, s%d, 5' % (a_, a_)); A('s_add_u32 s%d, s%d, s%d' % (t0, t0, a_))
        A('s_lshl_b32 s%d, s%d, 4' % (t0, t0)); A('s_and_b32 s%d, s%d, 15' % (a_, k)); A('s_add_u32 s%d, s%d, s%d' % (t0, t0, a_))
        A('s_lshl_b32 s%d, s%d, 7' % ((sKA, sKB)[X], t0))

cB1, cA2, cA4, cT1, cT2, cW, cRAW = 128, 152, 176, 224, 240, 112, 96
def col_consts():
    L = []
    th, st, c0, c1 = 4, 5, 6, 7
    L += ['s_mov_b32 s%d, 0x80008000' % sK[7]]
    def pair(dc, ds, dm, step_after):
        o = ['v_cos_f32 v%d, v%d' % (c0, th), 'v_sin_f32 v%d, v%d' % (c0 + 2, th), 'v_add_f32 v%d, v%d, v%d' % (th, th, st),
             'v_cos_f32 v%d, v%d' % (c1, th), 'v_sin_f32 v%d, v%d' % (c1 + 2, th), 'v_add_f32 v%d, v%d, v%d' % (th, th, step_after),
             'v_cvt_pk_bf16_f32 v%d, v%d, v%d' % (dc, c0, c1), 'v_cvt_pk_bf16_f32 v%d, v%d, v%d' % (ds, c0 + 2, c1 + 2),
             'v_xor_b32 v%d, s%d, v%d' % (dm, sK[7], ds)]
        return o
    L += ['s_lshl_b32 s%d, s%d, 4' % (sT[0], sW), 'v_add_u32 v11, s%d, v1' % sT[0], 'v_cvt_f32_u32 v11, v11',
          'v_mul_f32 v%d, %s, v11' % (st, f32(1 / 64)), 'v_mul_f32 v10, %s, v%d' % (f32(25.0), st),
          'v_cvt_f32_u32 v3, v2', 'v_mul_f32 v%d, %s, v3' % (th, f32(8.0)), 'v_mul_f32 v%d, v%d, v%d' % (th, th, st)]
    for k in range(2):
        for d in range(4): L += pair(cB1 + k * 12 + d, cB1 + k * 12 + 4 + d, cB1 + k * 12 + 8 + d, 10 if d == 3 else st)
    L += ['v_mul_f32 v%d, %s, v11' % (st, f32(1 / 2048)), 'v_mul_f32 v10, %s, v%d' % (f32(13.0), st),
          'v_mul_f32 v%d, 4.0, v3' % th, 'v_mul_f32 v%d, v%d, v%d' % (th, th, st)]
    for t in range(2):
        for r in range(4):
            L += ['v_cos_f32 v%d, v%d' % (cT1 + t * 4 + r, th), 'v_sin_f32 v%d, v%d' % (cT1 + 8 + t * 4 + r, th),
                  'v_add_f32 v%d, v%d, v%d' % (th, th, 10 if r == 3 else st)]
    for t in range(2):
        L += ['v_add_u32 v11, %d, v1' % (16 * t), 'v_cvt_f32_u32 v11, v11', 'v_mul_f32 v%d, %s, v11' % (st, f32(1 / 32)),
              'v_mul_f32 v10, %s, v%d' % (f32(13.0), st), 'v_mul_f32 v%d, 4.0, v3' % th, 'v_mul_f32 v%d, v%d, v%d' % (th, th, st)]
        for d in range(4): L += pair(cA2 + t * 12 + d, cA2 + t * 12 + 4 + d, cA2 + t * 12 + 8 + d, 10 if d == 1 else st)
        L += ['v_mul_f32 v%d, %s, v11' % (st, f32(1 / 2048)), 'v_lshl_add_u32 v%d, v2, 2, s%d' % (th, sT[0]), 'v_cvt_f32_u32 v%d, v%d' % (th, th),
              'v_mul_f32 v%d, v%d, v%d' % (th, th, st)]
        for r in range(4):
            L += ['v_cos_f32 v%d, v%d' % (cT2 + t * 4 + r, th), 'v_sin_f32 v%d, v%d' % (cT2 + 8 + t * 4 + r, th)]
            if r < 3: L += ['v_add_f32 v%d, v%d, v%d' % (th, th, st)]
    L += ['s_and_b32 s%d, s%d, 1' % (sT[1], sW), 's_lshl_b32 s%d, s%d, 5' % (sT[1], sT[1]),
          'v_lshrrev_b32 v11, 2, v1', 'v_and_b32 v10, 3, v1', 'v_lshl_add_u32 v11, v11, 3, v10', 'v_add_u32 v11, s%d, v11' % sT[1]]
    for mt in range(2):
        L += ['v_add_u32 v10, %d, v11' % (4 * mt), 'v_cvt_f32_u32 v10, v10', 'v_mul_f32 v%d, %s, v10' % (st, f32(1 / 64)),
              'v_mul_f32 v10, %s, v%d' % (f32(13.0), st), 'v_mul_f32 v%d, 4.0, v3' % th, 'v_mul_f32 v%d, v%d, v%d' % (th, th, st)]
        for w in range(4):
            b = cA4 + (mt * 4 + w) * 6
            for d in range(2): L += pair(b + 2 + d, b + d, b + 4 + d, 10 if d == 1 else st)
    return L

def col_phase(A):
    vi, vg = 1, 2
    VX, VS, VE1W, VL16, VE2W, VE2R = 12, 13, 14, 15, 3, 11
    RS = 16
    A('s_lshr_b32 s%d, s%d, 1' % (sT[0], sW)); A('s_lshl_b32 s%d, s%d, 5' % (sT[0], sT[0])); A('s_and_b32 s%d, s%d, 1' % (sT[1], sW))
    A('s_add_u32 s%d, s%d, s%d' % (sT[0], sT[0], sT[1]))
    A('v_lshl_add_u32 v4, v%d, 1, s%d' % (vi, sT[0]))
    A('v_mul_u32_u24 v%d, 40960, v4' % VX); A('v_lshl_add_u32 v%d, v%d, 4, v%d' % (VX, vg, VX))
    A('v_lshlrev_b32 v%d, 7, v4' % VS); A('v_lshl_add_u32 v%d, v%d, 5, v%d' % (VS, vg, VS))
    A('s_add_u32 s%d, s%d, s%d' % (sT[2], sXIN, sKA)); A('s_add_u32 s%d, s%d, s%d' % (sT[3], sXIN, sKB))
    for h in range(2): A('buffer_load_dwordx4 %s, v%d, %s, s%d offen offset:%d sc1' % (v(RS + 4 * h, 4), VS, WS, sSS, 16 * h))
    for X in range(2):
        for c in range(2):
            A('buffer_load_dwordx4 %s, v%d, %s, s%d offen offset:%d sc1' % (v(cRAW + (X * 2 + c) * 4, 4), VX, WS, sT[2 + X], 64 * c))
    yield 'loads'
    A('v_lshlrev_b32 v%d, 4, v0' % VL16)
    A('s_lshl_b32 s%d, s%d, 11' % (sT[0], sW)); A('v_add_u32 v%d, s%d, v%d' % (VE1W, sT[0], VL16))
    A('s_lshl_b32 s%d, s%d, 10' % (sT[0], sW)); A('v_add_u32 v%d, s%d, v%d' % (VE2W, sT[0], VL16))
    A('s_lshr_b32 s%d, s%d, 1' % (sT[0], sW)); A('s_lshl_b32 s%d, s%d, 12' % (sT[0], sT[0])); A('v_add_u32 v%d, s%d, v%d' % (VE2R, sT[0], VL16))
    for k in range(16): A('v_accvgpr_read_b32 v%d, a%d' % (cW + k, 240 + k))
    A('s_mov_b32 s%d, %s' % (sK[0], f32(1 / 640))); A('v_mov_b32 v4, %s' % f32(1e-5)); A('s_mov_b32 s%d, 0xffff0000' % sK[1])
    for j in range(8): A('v_fma_f32 v%d, v%d, s%d, v4' % (RS + j, RS + j, sK[0]))
    for j in range(8): A('v_rsq_f32 v%d, v%d' % (RS + j, RS + j))
    FRr = [24, 60]; Dr = [40, 76]; Pr = [56 - 0, 92 - 0]
    for X in range(2):
        for c in range(2):
            dst = FRr[X] + c * 4
            for d in range(4):
                raw = cRAW + (X * 2 + c) * 4 + d; t0 = Pr[X] + (d % 2) * 2
                A('v_lshlrev_b32 v%d, 16, v%d' % (t0, raw)); A('v_and_b32 v%d, s%d, v%d' % (t0 + 1, sK[1], raw))
                A('v_mul_f32 v%d, v%d, v%d' % (t0, t0, RS + 2 * d)); A('v_mul_f32 v%d, v%d, v%d' % (t0 + 1, t0 + 1, RS + 2 * d + 1))
                A('v_cvt_pk_bf16_f32 v%d, v%d, v%d' % (dst + d, t0, t0 + 1))
                A('%s v%d, s%d, v%d' % ('v_and_b32' if c == 0 else 'v_xor_b32', dst + d, sMSK[2 * X + c], dst + d))
            A('ds_write_b128 v%d, %s offset:%d' % (VE1W, v(dst, 4), X * 8192 + c * 1024))
    A('s_waitcnt lgkmcnt(0)'); A('s_barrier')
    D = lambda X, c, t: Dr[X] + (c * 2 + t) * 4
    def stage1(X):
        L = []
        for t in range(2):
            for k in range(2):
                for c in range(2):
                    L.append('ds_read_b128 %s, v%d offset:%d' % (v(FRr[X] + (k * 2 + c) * 4, 4), VL16, X * 8192 + ((t * 2 + k) * 2 + c) * 1024))
            for k in range(2):
                fa, fb = v(FRr[X] + (k * 2) * 4, 4), v(FRr[X] + (k * 2 + 1) * 4, 4)
                cs, sn, ms = [v(cB1 + k * 12 + q * 4, 4) for q in range(3)]
                z = '0' if k == 0 else None
                L += [mfma(v(D(X, 0, t), 4), fa, cs, z), mfma(v(D(X, 1, t), 4), fa, ms, z), mfma(v(D(X, 0, t), 4), fb, sn), mfma(v(D(X, 1, t), 4), fb, cs)]
        return L
    def cmul(X, cf, sf, sign, pack, pre=None):
        L = []
        for t in range(2):
            for h in range(2):
                tm = Pr[X]
                for e in range(2):
                    r = 2 * h + e; re, im = D(X, 0, t) + r, D(X, 1, t) + r
                    if pre: L += pre(t, r)
                    c_, s_ = cf(t, r), sf(t, r)
                    L += ['v_mul_f32 v%d, v%d, v%d' % (tm + e, re, c_), 'v_mul_f32 v%d, v%d, v%d' % (tm + 2 + e, im, c_),
                          'v_fma_f32 v%d, %sv%d, v%d, v%d' % (tm + e, '-' if sign > 0 else '', im, s_, tm + e),
                          'v_fma_f32 v%d, %sv%d, v%d, v%d' % (tm + 2 + e, '' if sign > 0 else '-', re, s_, tm + 2 + e)]
                dre, dim = pack(t, h)
                L += ['v_cvt_pk_bf16_f32 v%d, v%d, v%d' % (dre, tm, tm + 1), 'v_cvt_pk_bf16_f32 v%d, v%d, v%d' % (dim, tm + 2, tm + 3)]
        return L
    packA = lambda X: (lambda t, h: (FRr[X] + t * 2 + h, FRr[X] + 4 + t * 2 + h))
    packB = lambda X: (lambda t, h: (FRr[X] + t * 4 + h, FRr[X] + t * 4 + 2 + h))
    def tw1(X): return cmul(X, lambda t, r: cT1 + t * 4 + r, lambda t, r: cT1 + 8 + t * 4 + r, -1, packA(X))
    def tw2(X): return cmul(X, lambda t, r: cT2 + t * 4 + r, lambda t, r: cT2 + 8 + t * 4 + r, +1, packB(X))
    def wmul(X):
        u0 = FRr[X] + 8
        def pre(t, r):
            op = (lambda d, s_: 'v_lshlrev_b32 v%d, 16, v%d' % (d, s_)) if X == 0 else (lambda d, s_: 'v_and_b32 v%d, s%d, v%d' % (d, sK[1], s_))
            return [op(u0 + (r % 2) * 2, cW + t * 4 + r), op(u0 + (r % 2) * 2 + 1, cW + 8 + t * 4 + r)]
        return cmul(X, lambda t, r: u0 + (r % 2) * 2, lambda t, r: u0 + (r % 2) * 2 + 1, +1, packA(X), pre)
    def stage23(X, fwd):
        L = []
        fa, fb = v(FRr[X], 4), v(FRr[X] + 4, 4)
        for t in range(2):
            cs, sn, ms = [v(cA2 + t * 12 + q * 4, 4) for q in range(3)]
            if fwd: L += [mfma(v(D(X, 0, t), 4), cs, fa, '0'), mfma(v(D(X, 1, t), 4), ms, fa, '0'), mfma(v(D(X, 0, t), 4), sn, fb), mfma(v(D(X, 1, t), 4), cs, fb)]
            else:   L += [mfma(v(D(X, 0, t), 4), fa, cs, '0'), mfma(v(D(X, 1, t), 4), fa, sn, '0'), mfma(v(D(X, 0, t), 4), fb, ms), mfma(v(D(X, 1, t), 4), fb, cs)]
        return L
    def e2w(X): return ['ds_write_b128 v%d, %s offset:%d' % (VE2W, v(FRr[X] + t * 4, 4), 16384 + X * 8192 + t * 4096) for t in range(2)]
    def stage4(X):
        L = ['ds_read_b128 %s, v%d offset:%d' % (v(FRr[X] + w * 4, 4), VE2R, 16384 + X * 8192 + w * 1024) for w in range(4)]
        for w in range(4):
            for mt in range(2):
                b = cA4 + (mt * 4 + w) * 6; z = '0' if w == 0 else None
                L += [mfma(v(D(X, 0, mt), 4), v(b + 2, 4), v(FRr[X] + w * 4, 4), z), mfma(v(D(X, 1, mt), 4), v(b, 4), v(FRr[X] + w * 4, 4), z)]
        return L
    def epi(X):
        L = ['s_add_u32 s%d, s%d, s%d' % (sT[2 + X], sXOUT, (sKA, sKB)[X])]
        for c in range(2):
            for d in range(4):
                raw = cRAW + (X * 2 + c) * 4 + d; t0 = Pr[X] + (d % 2) * 2; y = D(X, c, d // 2) + (d % 2) * 2
                L += ['v_lshlrev_b32 v%d, 16, v%d' % (t0, raw), 'v_and_b32 v%d, s%d, v%d' % (t0 + 1, sK[1], raw),
                      'v_fmac_f32 v%d, s%d, v%d' % (t0, sMUL[2 * X + c], y), 'v_fmac_f32 v%d, s%d, v%d' % (t0 + 1, sMUL[2 * X + c], y + 1),
                      'v_cvt_pk_bf16_f32 v%d, v%d, v%d' % (raw, t0, t0 + 1)]
            L += ['buffer_store_dwordx4 %s, v%d, %s, s%d offen offset:%d sc1' % (v(cRAW + (X * 2 + c) * 4, 4), VX, WS, sT[2 + X], 64 * c)]
        return L
    A(stage1(0))
    A(spread(tw1(0), stage1(1)))
    A(spread(tw1(1), stage23(0, True), 0, 24))
    A(spread(wmul(0), stage23(1, True), 0, 24))
    A(spread(wmul(1), stage23(0, False), 0, 24))
    A(spread(tw2(0), stage23(1, False), 0, 24))
    A(e2w(0)); A(tw2(1)); A(e2w(1))
    A('s_waitcnt lgkmcnt(0)'); A('s_barrier')
    A(stage4(0))
    A(spread(epi(0), stage4(1)))
    A(epi(1))

def w1_loads():
    L = ['v_lshlrev_b32 v15, 4, v0', 's_lshl_b32 s%d, s%d, 2' % (sT[10], sFB), 's_add_u32 s%d, s%d, s%d' % (sT[10], sT[10], sW),
         's_mul_i32 s%d, s%d, 61440' % (sT[10], sT[10]), 's_add_u32 s%d, s%d, %d' % (sT[10], sT[10], O_W1)]
    for k in range(60):
        L.append('buffer_load_dwordx4 %s, v15, %s, s%d offen offset:%d sc1' % (a(k * 4, 4), WS, sT[10], (k % 4) * 1024))
        if k % 4 == 3: L.append('s_add_u32 s%d, s%d, 4096' % (sT[10], sT[10]))
    return L

def wd_reg(ks, nt):
    return v(96 + (ks * 5 + nt) * 4, 4) if ks < 8 else a(((ks - 8) * 5 + nt) * 4, 4)
def wd_loads(ks_list):
    L = []
    for ks in ks_list:
        if ks % 4 == 0 and ks > 0:
            L += ['s_add_u32 s%d, s%d, 4096' % (sK[nt], sK[nt]) for nt in range(5)]
        for nt in range(5):
            L.append('buffer_load_dwordx4 %s, v15, %s, s%d offen offset:%d sc1' % (wd_reg(ks, nt), WS, sK[nt], (ks % 4) * 1024))
    return L

G1ACC, G1FB = 16, 64
VB = [4, 5, 6, 7]; VHS = 8
def g1_phase(A):
    vi, vg = 1, 2
    A('v_lshrrev_b32 v9, 5, v0'); A('v_lshlrev_b32 v9, 1, v9'); A('v_xor_b32 v9, v9, v0'); A('v_lshlrev_b32 v9, 4, v9')
    A('s_mul_i32 s%d, s%d, 163840' % (sT[0], sPB)); A('s_add_u32 s%d, s%d, s%d' % (sT[0], sT[0], sXOUT)); A('v_add_u32 v9, s%d, v9' % sT[0])
    A('s_lshr_b32 s%d, s%d, 1' % (sT[0], sW)); A('s_mul_i32 s%d, s%d, 81920' % (sT[0], sT[0])); A('s_and_b32 s%d, s%d, 1' % (sT[1], sW))
    A('s_lshl_b32 s%d, s%d, 10' % (sT[1], sT[1])); A('s_add_u32 m0, s%d, s%d' % (sT[0], sT[1]))
    for k in range(40):
        A('buffer_load_dwordx4 v9, %s, m0 offen offset:%d sc1 lds' % (WS, (k % 2) * 2048), 'dma%d' % k)
        if k % 2 == 1 and k < 39: A('s_add_u32 m0, m0, 4096')
    A('v_lshrrev_b32 v10, 2, v%d' % vi); A('v_lshl_add_u32 v10, v%d, 3, v10' % vg); A('v_lshlrev_b32 v10, 6, v10')
    A('v_and_b32 v11, 1, v%d' % vg); A('v_lshl_add_u32 v10, v11, 5, v10'); A('v_and_b32 v11, 3, v0'); A('v_lshl_add_u32 v10, v11, 3, v10')
    A('s_mul_i32 s%d, s%d, 81920' % (sT[0], sHALF)); A('s_sub_u32 s%d, 81920, s%d' % (sT[1], sT[0]))
    A('v_add_u32 v%d, s%d, v10' % (VB[0], sT[0])); A('v_xor_b32 v%d, 32, v%d' % (VB[1], VB[0]))
    A('v_add_u32 v%d, s%d, v10' % (VB[2], sT[1])); A('v_xor_b32 v%d, 32, v%d' % (VB[3], VB[2]))
    A('v_lshrrev_b32 v10, 1, v%d' % vg); A('v_xor_b32 v10, s%d, v10' % sHALF); A('v_and_b32 v11, 1, v%d' % vg); A('v_lshl_add_u32 v10, v10, 2, v11')
    A('s_lshl_b32 s%d, s%d, 3' % (sT[0], sPB)); A('v_add_u32 v10, s%d, v10' % sT[0]); A('v_mul_u32_u24 v10, 49152, v10')
    A('v_lshl_add_u32 v%d, v%d, 4, v10' % (VHS, vi))
    A('s_lshl_b32 s%d, s%d, 2' % (sT[12], sFB)); A('s_add_u32 s%d, s%d, s%d' % (sT[12], sT[12], sW)); A('s_mul_i32 s%d, s%d, 768' % (sT[12], sT[12]))
    A('s_add_u32 s%d, s%d, s%d' % (sT[12], sT[12], sH))
    A('v_lshlrev_b32 v15, 4, v0')
    A('s_mul_i32 s%d, s%d, 240' % (sT[0], sCB)); A('s_mul_i32 s%d, s%d, 12' % (sT[1], sW)); A('s_add_u32 s%d, s%d, s%d' % (sT[0], sT[0], sT[1]))
    A('s_lshl_b32 s%d, s%d, 10' % (sT[0], sT[0])); A('s_mul_i32 s%d, s%d, %d' % (sT[1], sLAYER, O_WT - O_WD)); A('s_add_u32 s%d, s%d, s%d' % (sT[0], sT[0], sT[1]))
    for nt in range(5): A('s_add_u32 s%d, s%d, %d' % (sK[nt], sT[0], O_WD + nt * 49152))
    groups = {0: 1, 2: 5, 6: 12, 13: 19, 20: 39}
    def reads(kk):
        ks = kk % 20; L = []
        if kk in groups: L.append(lambda A_, n=groups[kk]: (A_.wait_vm('dma%d' % n), A_('s_barrier')))
        if kk == 20: L += ['v_add_u32 v%d, 40960, v%d' % (b, b) for b in VB]
        for tl in range(4):
            for h in range(2):
                L.append('ds_read_b64_tr_b16 %s, v%d offset:%d' % (v(G1FB + ((kk % 2) * 4 + tl) * 4 + 2 * h, 2), VB[tl], ks * 2048 + h * 256))
        return L
    acc = lambda tl, t: G1ACC + (tl * 3 + t) * 4
    wd = wd_loads(range(8)); wi = 0
    A(reads(0))
    for kk in range(40):
        ks = kk % 20
        M = [mfma(v(acc(tl, t), 4), a((ks * 3 + t) * 4, 4), v(G1FB + ((kk % 2) * 4 + tl) * 4, 4), '0' if ks == 0 else None) for tl in range(4) for t in range(3)]
        F = reads(kk + 1) if kk < 39 else []
        if kk >= 14:
            F = F + wd[wi:wi + 2]; wi += 2
        A(interleave(M, F))
        if ks == 19:
            for t in range(3):
                X, X2, Y, Y2 = acc(0, t), acc(1, t), acc(2, t), acc(3, t)
                for p, q in ((X, Y), (X2, Y2)):
                    for r in range(4): A('v_permlane32_swap_b32 v%d, v%d' % (p + r, q + r))
                for p, q in ((X, Y), (X2, Y2)):
                    for r in range(4): A('v_max_f32 v%d, 0, v%d' % (p + r, p + r))
                    for r in range(4): A('v_mul_f32 v%d, v%d, v%d' % (p + r, p + r, q + r))
                A('v_cvt_pk_bf16_f32 v%d, v%d, v%d' % (Y, X, X + 1)); A('v_cvt_pk_bf16_f32 v%d, v%d, v%d' % (Y + 1, X + 2, X + 3))
                A('v_cvt_pk_bf16_f32 v%d, v%d, v%d' % (Y + 2, X2, X2 + 1)); A('v_cvt_pk_bf16_f32 v%d, v%d, v%d' % (Y + 3, X2 + 2, X2 + 3))
                A('v_permlane16_swap_b32 v%d, v%d' % (Y, Y + 2)); A('v_permlane16_swap_b32 v%d, v%d' % (Y + 1, Y + 3))
                A('buffer_store_dwordx4 %s, v%d, %s, s%d offen offset:%d sc1' % (v(Y, 4), VHS, WS, sT[12], t * 256), 'hst')
            if kk == 19: A('s_add_u32 s%d, s%d, 98304' % (sT[12], sT[12]))
    A(wd[wi:])
    A(wd_loads(range(8, 12)))
    A.wait_vm('hst')
    A('s_lshl_b32 s%d, s%d, 2' % (sT[0], sFB)); A('s_add_u32 s%d, s%d, s%d' % (sT[0], sT[0], sW)); A('s_lshl_b32 s%d, s%d, 2' % (sT[0], sT[0]))
    A('s_add_u32 s%d, s%d, s%d' % (sT[0], sT[0], sFLG))
    A('v_mov_b32 v10, 1'); A('v_mov_b32 v11, 0'); A('s_mov_b64 exec, 1')
    A('buffer_store_dword v10, v11, %s, s%d offen sc1' % (WS, sT[0]))
    A('s_mov_b64 exec, -1')

G2ACC = 16
HREG = [80, 128, 176, 80]
def g2_common(A):
    vi, vg = 1, 2
    A('s_lshr_b32 s%d, s%d, 1' % (sT[0], sW)); A('s_mul_i32 s%d, s%d, 40960' % (sT[0], sT[0])); A('s_sub_u32 s%d, 40960, s%d' % (sT[0], sT[0]))
    A('s_and_b32 s%d, s%d, 1' % (sT[1], sW)); A('s_lshl_b32 s%d, s%d, 5' % (sT[1], sT[1]))
    A('v_subrev_u32 v9, s%d, v%d' % (sT[0], VB[0])); A('v_xor_b32 v9, s%d, v9' % sT[1])
    A('v_cmp_eq_u32 vcc, 0, v%d' % vg); A('v_mov_b32 v10, -1'); A('v_mov_b32 v11, 0xffff0000'); A('v_cndmask_b32 v10, v10, v11, vcc')
    NB = 6; FB = 32
    rd = lambda k: ['ds_read_b64_tr_b16 %s, v9 offset:%d' % (v(FB + (k % NB) * 4 + 2 * h, 2), k * 2048 + h * 256) for h in range(2)]
    for k in range(NB - 1): A(rd(k))
    for k in range(20):
        if k + NB - 1 < 20: A(rd(k + NB - 1))
        if k == 0: A('v_and_b32 v%d, v10, v%d' % (FB, FB))
        A(mfma(v(16, 4), v(FB + (k % NB) * 4, 4), v(FB + (k % NB) * 4, 4), '0' if k == 0 else None))
    A('v_and_b32 v10, 3, v%d' % vi)
    for r in range(1, 4):
        A('v_cmp_eq_u32 vcc, %d, v10' % r); A('v_cndmask_b32 v16, v16, v%d, vcc' % (16 + r))
    A('v_mov_b32 v11, %s' % f32(1e-5)); A('v_fmac_f32 v11, %s, v16' % f32(1 / 640))
    A('v_rcp_f32 v12, v11')
    A('s_mul_i32 s%d, s%d, 81920' % (sT[13], sHALF)); A('s_sub_u32 s%d, 81920, s%d' % (sT[13], sT[13]))
    A('s_barrier')
    A('s_lshl_b32 s%d, s%d, 6' % (sT[0], sW)); A('s_add_u32 s%d, s%d, s%d' % (sT[0], sT[0], sT[13]))
    A('v_lshl_add_u32 v10, v%d, 2, s%d' % (vi, sT[0]))
    A('v_lshrrev_b32 v13, 2, v%d' % vi); A('v_cmp_eq_u32 vcc, v13, v%d' % vg)
    A('s_mov_b64 exec, vcc')
    A('ds_write_b32 v10, v12 offset:49152'); A('ds_write_b32 v10, v11 offset:49408')
    A('s_mov_b64 exec, -1')

def h_loads(tl):
    L = ['s_add_u32 s%d, s%d, %d' % (sT[1], sT[14], tl * 49152)]
    for ks in range(12):
        L.append('buffer_load_dwordx4 %s, v15, %s, s%d offen offset:%d sc1' % (a(HREG[tl] + ks * 4, 4), WS, sT[1], (ks % 4) * 1024))
        if ks % 4 == 3 and ks < 11: L.append('s_add_u32 s%d, s%d, 4096' % (sT[1], sT[1]))
    return L

def g2_wait_h(A):
    A('s_lshl_b32 s%d, s%d, 6' % (sT[0], sW)); A('s_add_u32 s%d, s%d, s%d' % (sT[0], sT[0], sFLG))
    A('v_lshlrev_b32 v11, 2, v0')
    poll(A, WS, 's%d' % sT[0], 11, 'v_cmp_eq_u32 vcc, 0, {v}', 10, '0xffff')
    A('s_lshl_b32 s%d, s%d, 1' % (sT[0], sPB)); A('s_add_u32 s%d, s%d, s%d' % (sT[0], sT[0], sHALF)); A('s_mul_i32 s%d, s%d, 196608' % (sT[0], sT[0]))
    A('s_mul_i32 s%d, s%d, 12288' % (sT[1], sW)); A('s_add_u32 s%d, s%d, s%d' % (sT[0], sT[0], sT[1])); A('s_add_u32 s%d, s%d, s%d' % (sT[14], sT[0], sH))
    for tl in range(3): A(h_loads(tl))

def g2_mid(A):
    vi, vg = 1, 2
    g2_common(A)
    g2_wait_h(A)
    acc = lambda tl, nt: G2ACC + (tl * 5 + nt) * 4
    def mm(tiles):
        return [mfma(v(acc(tl, nt), 4), a(HREG[tl] + ks * 4, 4), wd_reg(ks, nt), '0' if ks == 0 else None) for ks in range(12) for tl in tiles for nt in range(5)]
    A(mm([0])); A(interleave(mm([1]), h_loads(3), start=2)); A(mm([2])); A(mm([3]))
    PITCH = 144
    A('v_mul_u32_u24 v9, %d, v%d' % (PITCH, vi)); A('v_lshl_add_u32 v10, v%d, 4, v9' % vg); A('v_lshl_add_u32 v11, v%d, 5, v9' % vg)
    A('s_mul_i32 s%d, s%d, %d' % (sT[0], sW, 80 * PITCH)); A('s_add_u32 s%d, s%d, s%d' % (sT[0], sT[0], sT[13])); A('v_add_u32 v10, s%d, v10' % sT[0])
    A('v_add_u32 v11, s%d, v11' % sT[13])
    A('v_lshlrev_b32 v12, 5, v%d' % vg); A('v_add_u32 v12, s%d, v12' % sT[13])
    red_idx(A, 3, vi, vg, 9)
    A('s_mov_b32 s%d, 0xffff0000' % sK[5])
    P = 96; SQ = 140; RS = 148; RES = 156; TM = 160
    for blk in range(2):
        if blk: A('s_barrier')
        for tt in range(2):
            for nt in range(5):
                A('ds_write_b128 v10, %s offset:%d' % (v(acc(blk * 2 + tt, nt), 4), nt * 16 * PITCH + tt * 64))
        A('s_waitcnt lgkmcnt(0)'); A('s_barrier')
        for h in range(2): A('ds_read_b128 %s, v12 offset:%d' % (v(RS + 4 * h, 4), 49152 + blk * 128 + 16 * h))
        for rnd in range(2):
            Ls = None
            if rnd == 1:
                Ls = A.newlabel('L_r2'); A('s_cmp_eq_u32 s%d, %d' % (sW, blk)); A('s_cbranch_scc0 ' + Ls)
                A('s_mov_b32 s%d, 4' % sT[2])
            else:
                A('s_mov_b32 s%d, s%d' % (sT[2], sW))
            A('s_mul_i32 s%d, s%d, %d' % (sT[0], sT[2], 16 * PITCH)); A('v_add_u32 v9, s%d, v11' % sT[0])
            for w in range(4):
                for h in range(2): A('ds_read_b128 %s, v9 offset:%d' % (v(P + (w * 2 + h) * 4, 4), w * 80 * PITCH + 16 * h))
            A('s_mul_i32 s%d, s%d, 5' % (sT[0], sCB)); A('s_add_u32 s%d, s%d, s%d' % (sT[0], sT[0], sT[2]))
            A('s_lshr_b32 s%d, s%d, 1' % (sT[1], sT[0])); A('s_lshl_b32 s%d, s%d, 5' % (sT[1], sT[1])); A('s_and_b32 s%d, s%d, 1' % (sT[0], sT[0]))
            A('s_add_u32 s%d, s%d, s%d' % (sT[0], sT[0], sT[1]))
            A('v_lshl_add_u32 v13, v%d, 1, s%d' % (vi, sT[0]))
            A('v_cmp_eq_u32 vcc, 0, v13')
            A('v_lshlrev_b32 v14, 6, v13'); A('v_lshl_add_u32 v14, v%d, 4, v14' % vg)
            A('v_lshlrev_b32 v13, 2, v13'); A('v_and_b32 v13, 32, v13'); A('v_xor_b32 v13, v13, v14')
            A('s_sub_u32 s%d, %d, s%d' % (sT[1], 81920 + blk * 40960, sT[13])); A('v_add_u32 v13, s%d, v13' % sT[1])
            A('ds_read_b128 %s, v13' % v(RES, 4))
            A('v_mov_b32 v9, 1.0'); A('v_mov_b32 v13, 0'); A('v_cndmask_b32 v9, v9, v13, vcc')
            for j in range(8): A('v_add_f32 v%d, v%d, v%d' % (P + j, P + j, P + 8 + j))
            for j in range(8): A('v_add_f32 v%d, v%d, v%d' % (P + 16 + j, P + 16 + j, P + 24 + j))
            for j in range(8): A('v_add_f32 v%d, v%d, v%d' % (P + j, P + j, P + 16 + j))
            for d in range(4):
                A('v_lshlrev_b32 v%d, 16, v%d' % (TM + 2 * d, RES + d)); A('v_and_b32 v%d, s%d, v%d' % (TM + 2 * d + 1, sK[5], RES + d))
            for j in range(8): A('v_fmac_f32 v%d, v%d, v%d' % (TM + j, P + j, RS + j))
            for d in range(4): A('v_cvt_pk_bf16_f32 v%d, v%d, v%d' % (P + 32 + d, TM + 2 * d, TM + 2 * d + 1))
            A('s_lshl_b32 s%d, s%d, 1' % (sT[0], sPB)); A('s_add_u32 s%d, s%d, s%d' % (sT[0], sT[0], sHALF)); A('s_mul_i32 s%d, s%d, 81920' % (sT[1], sT[0]))
            A('s_add_u32 s%d, s%d, %d' % (sT[1], sT[1], O_XH[2] + blk * 40960))
            A('buffer_store_dwordx4 %s, v14, %s, s%d offen sc1' % (v(P + 32, 4), WS, sT[1]))
            for j in range(8): A('v_mul_f32 v%d, v9, v%d' % (P + j, TM + j))
            for j in range(8):
                A(('v_mul_f32 v%d, v%d, v%d' if rnd == 0 else 'v_fmac_f32 v%d, v%d, v%d') % (SQ + j, P + j, TM + j))
            if Ls: A.label(Ls, pad=2); A.collapse()
        A(reduce16x8([SQ + j for j in range(8)], vi))
        A('s_lshl_b32 s%d, s%d, 1' % (sT[0], sPB)); A('s_add_u32 s%d, s%d, s%d' % (sT[0], sT[0], sHALF)); A('s_lshl_b32 s%d, s%d, 8' % (sT[0], sT[0]))
        A('s_add_u32 s%d, s%d, %d' % (sT[0], sT[0], O_SS2 + blk * 128))
        A('s_mov_b32 exec_lo, 0x33333333'); A('s_mov_b32 exec_hi, 0x33333333')
        A('buffer_atomic_add_f32 v%d, v3, %s, s%d offen sc1' % (SQ, WS, sT[0]))
        A('s_mov_b64 exec, -1')

def g2_final(A):
    vi, vg = 1, 2
    acc = lambda tl, nt: G2ACC + (tl * 5 + nt) * 4
    A('s_mul_i32 s%d, s%d, 100' % (sT[0], sCB)); A('s_mul_i32 s%d, s%d, 5' % (sT[1], sW)); A('s_add_u32 s%d, s%d, s%d' % (sT[0], sT[0], sT[1]))
    A('s_lshl_b32 s%d, s%d, 10' % (sT[0], sT[0])); A('s_add_u32 s%d, s%d, %d' % (sT[0], sT[0], O_FT))
    ft = lambda k, nt: a(80 + (k * 5 + nt) * 4, 4)
    for k in range(5):
        for nt in range(5):
            A('s_add_u32 s%d, s%d, %d' % (sT[1], sT[0], nt * 20480 + k * 1024))
            A('buffer_load_dwordx4 %s, v15, %s, s%d offen sc1' % (ft(k, nt), WS, sT[1]))
    g2_common(A)
    A('s_mul_i32 s%d, s%d, 10240' % (sT[0], sW)); A('s_sub_u32 s%d, s%d, 40960' % (sT[0], sT[0]))
    A('v_add_u32 v9, s%d, v%d' % (sT[0], VB[0])); A('v_xor_b32 v10, 32, v9')
    XF = 180
    seq = [(k, tl) for k in range(5) for tl in range(4)]
    NB = 6
    rd = lambda q: ['ds_read_b64_tr_b16 %s, v%d offset:%d' % (a(XF + (q % NB) * 4 + 2 * h, 2), 9 + seq[q][1] % 2, (seq[q][1] // 2) * 40960 + seq[q][0] * 2048 + h * 256) for h in range(2)]
    for q in range(NB - 1): A(rd(q))
    for q, (k, tl) in enumerate(seq):
        if q + NB - 1 < len(seq): A(rd(q + NB - 1))
        for nt in range(5): A(mfma(v(acc(tl, nt), 4), ft(k, nt), a(XF + (q % NB) * 4, 4), '0' if k == 0 else None))
    A('s_waitcnt lgkmcnt(0)'); A('s_barrier')
    A('v_lshl_add_u32 v9, v%d, 2, s%d' % (vi, sT[13]))
    for tl in range(4): A('ds_read_b32 v%d, v9 offset:%d' % (4 + tl, 49408 + tl * 64))
    g2_wait_h(A)
    for tl in range(4):
        for q in range(20): A('v_mul_f32 v%d, v%d, v%d' % (acc(tl, 0) + q, 4 + tl, acc(tl, 0) + q))
    def mm(tiles):
        return [mfma(v(acc(tl, nt), 4), wd_reg(ks, nt), a(HREG[tl] + ks * 4, 4)) for ks in range(12) for tl in tiles for nt in range(5)]
    A(mm([0])); A(interleave(mm([1]), h_loads(3), start=2)); A(mm([2])); A(mm([3]))
    PITCH = 336
    A('v_mul_u32_u24 v10, %d, v%d' % (PITCH, vi)); A('v_lshl_add_u32 v10, v%d, 4, v10' % vg)
    A('s_mul_i32 s%d, s%d, %d' % (sT[0], sW, 32 * PITCH)); A('s_add_u32 s%d, s%d, s%d' % (sT[0], sT[0], sT[13])); A('v_add_u32 v10, s%d, v10' % sT[0])
    srd(A, 12, pOUT, XHSZ)
    P = 96
    for blk in range(2):
        if blk: A('s_barrier')
        for tt in range(2):
            for nt in range(5):
                A('ds_write_b128 v10, %s offset:%d' % (v(acc(blk * 2 + tt, nt), 4), tt * 16 * PITCH + nt * 64))
        A('s_waitcnt lgkmcnt(0)'); A('s_barrier')
        for rnd in range(2):
            Ls = None
            if rnd == 1:
                Ls = A.newlabel('L_f2'); A('s_cmp_eq_u32 s%d, %d' % (sW, blk)); A('s_cbranch_scc0 ' + Ls)
                A('s_mov_b32 s%d, 256' % sT[2])
            else:
                A('s_lshl_b32 s%d, s%d, 6' % (sT[2], sW))
            A('v_add_u32 v11, s%d, v0' % sT[2]); A('v_mul_u32_u24 v12, 6554, v11'); A('v_lshrrev_b32 v12, 16, v12')
            A('v_mul_u32_u24 v13, 10, v12'); A('v_sub_u32 v11, v11, v13')
            A('v_mul_u32_u24 v13, %d, v12' % PITCH); A('v_lshl_add_u32 v13, v11, 5, v13'); A('v_add_u32 v13, s%d, v13' % sT[13])
            for w in range(4):
                for h in range(2): A('ds_read_b128 %s, v13 offset:%d' % (v(P + (w * 2 + h) * 4, 4), w * 32 * PITCH + 16 * h))
            A('v_lshl_add_u32 v13, v12, 2, s%d' % sT[13]); A('ds_read_b32 v9, v13 offset:%d' % (49152 + blk * 128))
            A('v_mul_u32_u24 v12, 40960, v12'); A('v_lshl_add_u32 v12, v11, 4, v12')
            A('s_lshl_b32 s%d, s%d, 1' % (sT[0], sPB)); A('s_add_u32 s%d, s%d, s%d' % (sT[0], sT[0], sHALF)); A('s_mul_i32 s%d, s%d, 1280' % (sT[0], sT[0]))
            A('s_mul_i32 s%d, s%d, 160' % (sT[1], sCB)); A('s_add_u32 s%d, s%d, s%d' % (sT[0], sT[0], sT[1])); A('s_add_u32 s%d, s%d, %d' % (sT[0], sT[0], blk * 1024 * 1280))
            for j in range(8): A('v_add_f32 v%d, v%d, v%d' % (P + j, P + j, P + 8 + j))
            for j in range(8): A('v_add_f32 v%d, v%d, v%d' % (P + 16 + j, P + 16 + j, P + 24 + j))
            for j in range(8): A('v_add_f32 v%d, v%d, v%d' % (P + j, P + j, P + 16 + j))
            for j in range(8): A('v_mul_f32 v%d, v9, v%d' % (P + j, P + j))
            for d in range(4): A('v_cvt_pk_bf16_f32 v%d, v%d, v%d' % (P + 32 + d, P + 2 * d, P + 2 * d + 1))
            A('buffer_store_dwordx4 %s, v12, %s, s%d offen' % (v(P + 32, 4), OUT, sT[0]))
            if Ls: A.label(Ls, pad=2); A.collapse()

def run(g):
    for _ in g: pass

def build():
    A = Asm()
    A('s_cmp_ge_u32 s2, 256'); A('s_cbranch_scc1 L_end')
    A('s_load_dwordx16 s[16:31], s[0:1], 0'); A('s_load_dwordx4 s[32:35], s[0:1], 64')
    A('v_lshrrev_b32 v1, 6, v0'); A('v_and_b32 v0, 63, v0'); A('v_readfirstlane_b32 s%d, v1' % sW)
    A('s_and_b32 s%d, s2, 7' % sT[0]); A('s_lshr_b32 s%d, s2, 3' % sT[1])
    A('s_and_b32 s%d, s%d, 1' % (sHALF, sT[0])); A('s_and_b32 s%d, s%d, 7' % (sCB, sT[1]))
    A('s_lshl_b32 s%d, s%d, 3' % (sFB, sHALF)); A('s_add_u32 s%d, s%d, s%d' % (sFB, sFB, sCB))
    A('s_lshr_b32 s%d, s%d, 1' % (sPB, sT[0])); A('s_lshl_b32 s%d, s%d, 2' % (sPB, sPB)); A('s_lshr_b32 s%d, s%d, 3' % (sT[1], sT[1])); A('s_add_u32 s%d, s%d, s%d' % (sPB, sPB, sT[1]))
    A('s_mov_b32 s%d, 0' % sLAYER); A('s_mov_b32 s%d, %d' % (sBAR, O_CNT))
    A('s_mov_b32 s%d, %d' % (sXIN, O_XH[0])); A('s_mov_b32 s%d, %d' % (sXOUT, O_XH[1])); A('s_mov_b32 s%d, %d' % (sSS, O_SS0)); A('s_mov_b32 s%d, %d' % (sH, O_H[0]))
    A('s_lshl_b32 s%d, s%d, 8' % (sFLG, sPB)); A('s_add_u32 s%d, s%d, %d' % (sFLG, sFLG, O_FLAG))
    A('s_lshl_b32 s%d, s2, 7' % sSTI); A('s_add_u32 s%d, s%d, %d' % (sSTI, sSTI, O_STAMP))
    A('s_waitcnt lgkmcnt(0)')
    srd(A, 8, pWS, WSSZ)
    stamp(A)
    A('s_cmp_lt_u32 s2, 64'); A('s_cbranch_scc1 L_px')
    A('s_cmp_lt_u32 s2, 160'); A('s_cbranch_scc1 L_pw')
    A('s_cmp_lt_u32 s2, 208'); A('s_cbranch_scc1 L_pd')
    A('s_cmp_eq_u32 s2, 255'); A('s_cbranch_scc0 L_pt')
    A('v_lshlrev_b32 v4, 4, v0'); A('s_lshl_b32 s%d, s%d, 10' % (sT[0], sW)); A('v_add_u32 v4, s%d, v4' % sT[0])
    for r in range(4): A('v_mov_b32 v%d, 0' % (8 + r))
    offs = [k * 4096 for k in range(10)] + [O_SS2, O_SS2 + 4096]
    for o in offs:
        A('s_mov_b32 s%d, %d' % (sT[0], o)); A('buffer_store_dwordx4 v[8:11], v4, %s, s%d offen sc1' % (WS, sT[0]))
    A('s_waitcnt vmcnt(0)'); A('s_barrier')
    srd(A, SA, pDBG, 256)
    A('v_mov_b32 v9, 1'); A('s_mov_b64 exec, 1'); A('buffer_store_dword v9, v8, s[40:43], 0 offen sc1'); A('s_mov_b64 exec, -1')
    A.label('L_pt'); A.collapse()
    A('s_sub_u32 s%d, s2, 208' % sT[8])
    path_t(A)
    A('s_branch L_p0done')
    A.label('L_pd'); A.vm = []; A.lg = []
    A('s_sub_u32 s%d, s2, 160' % sT[8])
    run(path_x(A, False))
    A('s_branch L_p0done')
    A.label('L_pw'); A.vm = []; A.lg = []
    A('s_and_b32 s%d, s2, 7' % sT[8]); A('s_mul_i32 s%d, s%d, 12' % (sT[8], sT[8])); A('s_sub_u32 s%d, s2, 64' % sT[0]); A('s_lshr_b32 s%d, s%d, 3' % (sT[0], sT[0]))
    A('s_add_u32 s%d, s%d, s%d' % (sT[8], sT[8], sT[0]))
    g = path_w(A); next(g); w_gather(A); run(g)
    A('s_branch L_p0done')
    A.label('L_px'); A.vm = []; A.lg = []
    A('s_mov_b32 s%d, s2' % sT[8])
    g = path_x(A, True); next(g)
    w_gather(A)
    run(g)
    A.label('L_p0done'); A.collapse()
    stamp(A)
    bar_arrive(A, 256, check_ready=True)
    if cfg.stop == 0: A('s_branch L_end')
    A.label('L_layer', pad=1); A.collapse()
    lane_idx(A, 1, 2)
    A('s_cmp_lt_u32 s2, 160'); A('s_cbranch_scc1 L_col')
    bar_wait(A); bar_next(A)
    A(w1_loads())
    A('s_branch L_coldone')
    A.label('L_col'); A.vm = []; A.lg = []; A.collapse()
    A(col_consts())
    bar_wait(A); bar_next(A)
    stamp(A)
    g = col_phase(A); next(g); A(w1_loads()); run(g)
    stamp(A)
    bar_arrive(A, 160)
    A.label('L_coldone'); A.collapse({('a', i) for i in range(240)})
    if cfg.stop == 1: A('s_branch L_end')
    if cfg.stop == 4:
        A('s_cmp_eq_u32 s%d, 1' % sLAYER); A('s_cbranch_scc1 L_end')
    bar_wait(A); bar_next(A)
    stamp(A)
    g1_phase(A)
    stamp(A, 12)
    if cfg.stop == 2: A('s_branch L_end')
    A('s_cmp_eq_u32 s%d, 1' % sLAYER); A('s_cbranch_scc1 L_final')
    saved = (list(A.vm), list(A.lg))
    g2_mid(A)
    stamp(A)
    bar_arrive(A, 256)
    if cfg.stop == 3: A('s_branch L_end')
    A('s_mov_b32 s%d, 1' % sLAYER)
    A('s_mov_b32 s%d, %d' % (sXIN, O_XH[2])); A('s_mov_b32 s%d, %d' % (sXOUT, O_XH[3])); A('s_mov_b32 s%d, %d' % (sSS, O_SS2)); A('s_mov_b32 s%d, %d' % (sH, O_H[1]))
    A('s_add_u32 s%d, s%d, 4096' % (sFLG, sFLG))
    A('s_branch L_layer')
    A.label('L_final', pad=1); A.vm, A.lg = saved
    g2_final(A)
    A('s_waitcnt vmcnt(0)')
    stamp(A)
    A.label('L_end')
    A('s_endpgm')
    return A

HEAD = open('interleave_layers__spectral_gfnet__glu_gated_reglu__prompt.s.ref').read().split('; Override')[0] if True else ''
def emit(path):
    A = build()
    txt = HEAD + '; @launch grid=(256,1,1) block=(256,1,1) lds=163840\n.amdgcn_target "amdgcn-amd-amdhsa--gfx950"\n.text\n.globl %s\n.p2align 8\n.type %s,@function\n%s:\n' % (KN, KN, KN)
    txt += A.text()
    txt += '''.section .rodata,"a"
.p2align 6
.amdhsa_kernel %s
  .amdhsa_next_free_vgpr 512
  .amdhsa_next_free_sgpr 102
  .amdhsa_accum_offset 256
  .amdhsa_group_segment_fixed_size 0
  .amdhsa_kernarg_size 80
  .amdhsa_user_sgpr_count 2
  .amdhsa_user_sgpr_kernarg_segment_ptr 1
  .amdhsa_system_sgpr_workgroup_id_x 1
  .amdhsa_float_denorm_mode_32 3
.end_amdhsa_kernel
''' % KN
    open(path, 'w').write(txt)
    print(path, A.nins, 'instructions', A.stats)

if __name__ == '__main__':
    out = sys.argv[1]
    for kv in sys.argv[2:]:
        k, val = kv.split('='); setattr(cfg, k, int(val))
    emit(out)
```
